```python
import torch

def _softmax(x, axis=-1):
    return torch.softmax(x, dim=axis)
def _gelu(x):
    return torch.nn.functional.gelu(x, approximate="tanh")
def _silu(x):
    return torch.nn.functional.silu(x)
def _sigmoid(x):
    return torch.sigmoid(x)
def _layernorm(x, axis=-1, eps=1e-5):
    m = x.mean(dim=axis, keepdim=True)
    v = x.var(dim=axis, keepdim=True, unbiased=False)
    return (x - m) / torch.sqrt(v + eps)
def _scatter_add(tgt, idx, src, axis=0):
    return tgt.clone().index_add_(axis, idx, src)
def _segment_sum(src, seg, n):
    out = torch.zeros((n,) + src.shape[1:], dtype=src.dtype)
    return out.index_add_(0, seg, src)
def _pad(x, pw):
    flat = tuple(v for pair in reversed(pw) for v in pair)
    return torch.nn.functional.pad(x, flat)

kernel_name = 'recurrent_scan__spectral_gfnet__mixer_channel_mlp__prompt'

def setup_inputs():

    _w = (lambda a: (lambda t: t.to(torch.bfloat16) if t.is_floating_point() else t)(torch.as_tensor(a)))
    def _A_setup():
        B, S, D = 1, 2048, 512
        Df = D // 2 + 1
        return {
            "x": _w((lambda *s: torch.randn(*s, dtype=torch.bfloat16) * 0.05)(B, S, D)),
            "w_r": _w((lambda *s: torch.randn(*s, dtype=torch.bfloat16) * 0.8)(S, Df) * 0.02),
            "w_i": _w((lambda *s: torch.randn(*s, dtype=torch.bfloat16) * 0.8)(S, Df) * 0.02),
        }
    _A_in = _A_setup()

    def _B_setup():
        B, S, D, F = 1, 2048, 512, 1792
        return {
            "x": _w((lambda *s: torch.randn(*s, dtype=torch.bfloat16) * 0.05)(B, S, D)),
            "w1": _w((lambda *s: torch.randn(*s, dtype=torch.bfloat16) * 0.8)(D, F) * (D ** -0.5)),
            "b1": _w((lambda *s: torch.randn(*s, dtype=torch.bfloat16) * 0.8)(F)),
            "w2": _w((lambda *s: torch.randn(*s, dtype=torch.bfloat16) * 0.8)(F, D) * (F ** -0.5)),
            "b2": _w((lambda *s: torch.randn(*s, dtype=torch.bfloat16) * 0.2)(D)),
        }
    _B_in = _B_setup()

    return {
        "A_x": _A_in["x"],
        "A_w_r": _A_in["w_r"],
        "A_w_i": _A_in["w_i"],
        "B_x": _B_in["x"],
        "B_w1": _B_in["w1"],
        "B_b1": _B_in["b1"],
        "B_w2": _B_in["w2"],
        "B_b2": _B_in["b2"],
    }

def reference(A_x, A_w_r, A_w_i, B_x, B_w1, B_b1, B_w2, B_b2):
    def _A_ref(x, w_r, w_i):
        B, S, D = x.shape
        X = (lambda x, axes=(-2,-1): torch.fft.rfft2(x.float(), dim=axes))(x, axes=(-2, -1))
        W = w_r + 1j * w_i
        X = X * W
        y = (lambda x, s, axes=(-2,-1): torch.fft.irfft2(x, s=s, dim=axes).to(torch.bfloat16))(X, (S, D), axes=(-2, -1))
        return y

    def _B_ref(x, w1, b1, w2, b2):
        y = _layernorm(x, axis=-1)
        h = _gelu(torch.einsum("bsd,df->bsf", y, w1) + b1)
        return torch.einsum("bsf,fd->bsd", h, w2) + b2

    x = A_x
    xn = _layernorm(x, axis=-1)
    s = _A_ref(xn, A_w_r, A_w_i)
    g = _silu(_B_ref(xn, B_w1, B_b1, B_w2, B_b2))
    return x + s * g
```

```python
class Asm:
    def __init__(self):
        self.lines = []
        self.nlabel = 0
    def __call__(self, s, *a):
        for l in s.strip('\n').split('\n'):
            self.lines.append('    ' + l.strip() if not l.strip().endswith(':') else l.strip())
    def label(self, name):
        self.lines.append(name + ':')
    def newlabel(self, p='L'):
        self.nlabel += 1
        return f'{p}_{self.nlabel}'
    def text(self):
        return '\n'.join(self.lines) + '\n'

def vr(a, n=1):
    return f'v{a}' if n == 1 else f'v[{a}:{a+n-1}]'
def ar(a, n=1):
    return f'a{a}' if n == 1 else f'a[{a}:{a+n-1}]'
def sr(a, n=1):
    return f's{a}' if n == 1 else f's[{a}:{a+n-1}]'

HEADER = open('recurrent_scan__spectral_gfnet__mixer_channel_mlp__prompt.s.ref').read().split('; Override launch')[0]

def build_file(kernels, single=False):
    out = [HEADER.rstrip('\n')]
    for k in kernels:
        if single:
            out.append(f"; @launch grid=({k['grid']},1,1) block=({k['block']},1,1) lds={k['lds']}")
        else:
            out.append(f"; @launch kernel={k['name']} grid=({k['grid']},1,1) block=({k['block']},1,1) lds={k['lds']}")
    out.append('.amdgcn_target "amdgcn-amd-amdhsa--gfx950"')
    out.append('.text')
    seen = []
    for k in kernels:
        if k['name'] in seen: continue
        seen.append(k['name'])
        out.append(f".globl {k['name']}")
        out.append('.p2align 8')
        out.append(f".type {k['name']},@function")
        out.append(f"{k['name']}:")
        out.append(k['body'].rstrip('\n'))
        out.append('    s_endpgm')
    out.append('.section .rodata,"a"')
    seen = []
    for k in kernels:
        if k['name'] in seen: continue
        seen.append(k['name'])
        out.append('.p2align 6')
        out.append(f".amdhsa_kernel {k['name']}")
        out.append(f"  .amdhsa_next_free_vgpr {k.get('nfv',256)}")
        out.append(f"  .amdhsa_next_free_sgpr {k.get('nfs',102)}")
        out.append(f"  .amdhsa_accum_offset {k.get('accum',256)}")
        out.append("  .amdhsa_group_segment_fixed_size 0")
        out.append("  .amdhsa_kernarg_size 88")
        out.append("  .amdhsa_user_sgpr_count 2")
        out.append("  .amdhsa_user_sgpr_kernarg_segment_ptr 1")
        out.append("  .amdhsa_system_sgpr_workgroup_id_x 1")
        if k.get('denorm'):
            out.append("  .amdhsa_float_denorm_mode_32 3")
        out.append(".end_amdhsa_kernel")
    return '\n'.join(out) + '\n'
```

```python
import sys, struct, math
sys.path.insert(0, 'gen')
from prog import *
from asmlib import build_file
def fx(x): return '0x%08x' % struct.unpack('<I', struct.pack('<f', x))[0]
def V(a, n=1): return f'v{a}' if n == 1 else f'v[{a}:{a+n-1}]'
def A(a, n=1): return f'a{a}' if n == 1 else f'a[{a}:{a+n-1}]'
X, WR, WI, W1, B1, W2, B2, OUT, DBG, WS = [f's[{4+4*i}:{7+4*i}]' for i in range(10)]
sW, sRB, sHC, sCP, sHC2, sBP, sCB, sXOR = range(44, 52)
H_OFF, Z_OFF, Y_OFF, FL_OFF = 0, 8 << 20, 10 << 20, 12 << 20
L_F, L_ZT, L_XP = 114688, 147456, 155648
STAMP_OFF = 128 << 20
M16 = 'v_mfma_f32_16x16x32_bf16'; M32 = 'v_mfma_f32_32x32x16_bf16'
CVT = 'v_cvt_pk_bf16_f32'

def prologue(p, exitl, diag):
    p(f's_cmp_ge_u32 s2, 256\ns_cbranch_scc1 {exitl}')
    if diag:
        for i in range(88, 102): p(f's_mov_b32 s{i}, 0')
        p('s_memrealtime s[86:87]')
    offs = [0, 8, 16, 32, 40, 48, 56, 64, 72, 80]
    size = [2097152, 2048*514, 2048*514, 512*3584, 3584, 1792*1024, 1024, 2097152, 256, 256 << 20]
    order = [0, 3, 9, 4, 5, 1, 2, 6, 7, 8]
    for i in order: p(f's_load_dwordx2 s[{4+4*i}:{5+4*i}], s[0:1], {offs[i]}')
    p(f'''v_lshrrev_b32 v1, 6, v0
    v_and_b32 v0, 63, v0
    s_and_b32 s52, s2, 7
    v_readfirstlane_b32 s{sW}, v1
    s_lshr_b32 s53, s2, 3
    v_and_b32 v1, 15, v0
    v_lshrrev_b32 v2, 4, v0
    s_lshr_b32 s54, s52, 1
    s_and_b32 s55, s53, 3
    s_lshl2_add_u32 s{sRB}, s54, s55
    s_and_b32 s54, s52, 1
    s_lshr_b32 s{sCB}, s53, 2
    s_lshl3_add_u32 s{sHC}, s54, s{sCB}
    s_lshl2_add_u32 s{sBP}, s52, s55
    s_and_b32 s54, s53, 1
    s_lshl1_add_u32 s{sCP}, s52, s54
    s_lshr_b32 s{sHC2}, s53, 1''')
    for i in order: p(f's_mov_b32 s{6+4*i}, {size[i]}\ns_mov_b32 s{7+4*i}, 0x20000')

def stamp(p, i, diag):
    if diag: p(f's_memrealtime s[{86+2*i}:{87+2*i}]')
def stamp_out(p, kidx, lab):
    p(f'''s_waitcnt vmcnt(0) lgkmcnt(0)
    s_cmp_lg_u32 s{sW}, 0
    s_cbranch_scc1 {lab}
    s_lshl_b32 s52, s2, 6
    s_add_u32 s52, s52, {STAMP_OFF + kidx*65536}
    v_mov_b32 v3, s52
    v_cmp_eq_u32 vcc, 0, v0
    s_and_saveexec_b64 s[54:55], vcc''')
    for i in range(8):
        p(f'v_mov_b32 v4, s{86+2*i}\nv_mov_b32 v5, s{87+2*i}\nbuffer_store_dwordx2 v[4:5], v3, {WS}, 0 offen offset:{8*i}\ns_nop 1')
    p('s_waitcnt vmcnt(0)')
def ismfma(x): return x.kind == 'mfma'
```

```python
from k_common import *
vXO, vDMA, vT, vF, vONE, vD32, vB1, vHID, vXF, vTMP = 3, 5, 12, 16, 20, 24, 40, 56, 112, 224
aX, aFR, aCS, aSUM, aSQ = 0, 128, 200, 228, 236
def g1_addr(p):
    p(f'''s_add_u32 s52, s{sRB}, s{sHC}
    s_and_b32 s52, s52, 3
    s_lshl2_add_u32 s53, s52, s{sW}
    s_lshl_b32 s{sXOR}, s53, 6
    s_lshl2_add_u32 s54, s{sRB}, s{sW}
    s_lshl_b32 s54, s54, 10
    v_lshlrev_b32 v{vXO}, 16, v1
    v_lshl_add_u32 v{vXO}, v2, 4, v{vXO}
    v_add_u32 v{vXO}, s54, v{vXO}
    v_add_u32 v{vXO+1}, 0x100000, v{vXO}
    s_mul_i32 s55, s{sHC}, 224
    s_mul_i32 s56, s{sW}, 7168''')
    for m in range(4):
        p(f's_xor_b32 s52, s53, {4*m}\ns_mul_i32 s52, s52, 114688\ns_add_u32 s{82+m}, s52, s55')
def g1_dma_addr(q):
    p = Prog(); t = vTMP; d = vDMA + q
    p(f'''v_add_u32 v{t}, {64*q}, v0
    v_mul_u32_u24 v{t+1}, 4682, v{t}
    v_lshrrev_b32 v{t+1}, 16, v{t+1}
    v_mul_u32_u24 v{t+2}, 14, v{t+1}
    v_sub_u32 v{t}, v{t}, v{t+2}
    v_lshrrev_b32 v{t+2}, 1, v{t+1}
    v_xor_b32 v{t+2}, v{t+2}, v{t+1}
    v_and_b32 v{t+2}, 4, v{t+2}
    v_mul_u32_u24 v{t+2}, 3, v{t+2}
    v_xor_b32 v{t+1}, v{t+2}, v{t+1}
    v_mul_u32_u24 v{t+1}, 3584, v{t+1}
    v_lshl_add_u32 v{d}, v{t}, 4, v{t+1}''')
    if q & 3: p(f'v_subrev_u32 v{d}, {(q&3)*1024}, v{d}')
    return p
def g1_loads():
    L = []
    for m in range(4):
        dm, xl = [], []
        for q in range(7):
            g = Prog()
            if m == 0: g.add(g1_dma_addr(q))
            if q in (0, 4): g(f's_add_u32 m0, s56, {m*28672 + (q>>2)*4096}')
            g(f'buffer_load_dwordx4 v{vDMA+q}, {W1}, s{82+m} offen offset:{(q&3)*1024} lds', f'dma{m}')
            dm.append(g)
        for i in range(4):
            for tt in range(2):
                g = Prog()
                if tt == 0: g(f's_xor_b32 s57, s{sXOR}, {(4*m+i)*64}')
                g(f'buffer_load_dwordx4 {A(aX+(tt*16+4*m+i)*4,4)}, v{vXO+tt}, {X}, s57 offen')
                xl.append(g)
        L += (xl[:4] + dm + xl[4:]) if m == 0 else (dm + xl)
    return L
def g1_consts():
    p = Prog(); t = vTMP
    p(f'''v_lshrrev_b32 v{t}, 1, v2
    v_and_b32 v{t+1}, 1, v2
    v_lshlrev_b32 v{t}, 4, v{t}
    v_lshl_add_u32 v{t}, v{t+1}, 2, v{t}
    v_lshrrev_b32 v{t+1}, 2, v1
    v_add_u32 v{t}, v{t}, v{t+1}
    v_mul_u32_u24 v{t}, 224, v{t}
    v_and_b32 v{t+1}, 3, v1
    v_lshl_add_u32 v{t}, v{t+1}, 3, v{t}
    v_lshlrev_b32 v{t+2}, 4, v0
    v_cmp_eq_u32 s[76:77], 1, v{t+1}
    v_cmp_eq_u32 s[78:79], 2, v{t+1}
    v_cmp_eq_u32 s[80:81], 3, v{t+1}''')
    for i in range(4):
        p(f'''s_xor_b32 s52, s{sW}, {i}
        s_mul_i32 s53, s52, 7168
        s_lshl_b32 s52, s52, 11
        s_add_u32 s52, s52, {L_F}
        v_add_u32 v{vT+i}, s53, v{t}
        v_add_u32 v{vF+i}, s52, v{t+2}
        v_mov_b32 v{vONE+i}, 0x3f803f80''')
    p(f'''v_mov_b32 v{t+4}, 0
    v_mov_b32 v{t+5}, 0
    v_lshlrev_b32 v{t+3}, 3, v0
    s_lshl_b32 s52, s{sW}, 11
    s_add_u32 s52, s52, {L_XP}
    v_add_u32 v{t+3}, s52, v{t+3}
    ds_write_b64 v{t+3}, v[{t+4}:{t+5}]''')
    k2f, g8, ang, c, s = t, t+1, t+2, t+4, t+12
    p(f'''s_lshl_b32 s52, s{sHC}, 4
    s_add_u32 s52, s52, 1
    v_add_u32 v{k2f}, s52, v1
    v_cvt_f32_u32 v{k2f}, v{k2f}
    v_mul_f32 v{k2f}, {fx(1/512)}, v{k2f}
    v_lshlrev_b32 v{g8}, 3, v2''')
    for m in range(4):
        p(f'''s_xor_b32 s52, s{sXOR}, {m*256}
        s_lshr_b32 s52, s52, 1
        v_add_u32 v{ang}, s52, v{g8}
        v_cvt_f32_u32 v{ang}, v{ang}
        v_mul_f32 v{ang}, v{ang}, v{k2f}''')
        for j in range(8):
            p(f'v_cos_f32 v{c+j}, v{ang}\nv_sin_f32 v{s+j}, v{ang}')
            if j < 7: p(f'v_add_f32 v{ang}, v{ang}, v{k2f}')
        for j in range(4):
            p(f'{CVT} v{t+20+j}, v{c+2*j}, v{c+2*j+1}\n{CVT} v{t+24+j}, -v{s+2*j}, -v{s+2*j+1}')
        p(f'ds_write_b128 v{vF}, {V(t+20,4)} offset:{m*8192}\nds_write_b128 v{vF}, {V(t+24,4)} offset:{m*8192+1024}')
    return p
def d32_consts():
    p = Prog(); t = vTMP
    lf, ang, c, s = t, t+1, t+4, t+12
    p(f'''v_cvt_f32_u32 v{lf}, v1
    v_cvt_f32_u32 v{ang}, v2
    v_mul_f32 v{lf}, {fx(1/32)}, v{lf}
    v_mul_f32 v{ang}, 4.0, v{ang}
    v_mul_f32 v{ang}, v{ang}, v{lf}''')
    for j in range(8):
        p(f'v_cos_f32 v{c+j}, v{ang}\nv_sin_f32 v{s+j}, v{ang}')
        if j == 3: p(f'v_fmamk_f32 v{ang}, v{lf}, {fx(13.0)}, v{ang}')
        elif j < 7: p(f'v_add_f32 v{ang}, v{ang}, v{lf}')
    for j in range(4):
        p(f'''{CVT} v{vD32+j}, v{c+2*j}, v{c+2*j+1}
        {CVT} v{vD32+4+j}, v{s+2*j}, v{s+2*j+1}
        {CVT} v{vD32+8+j}, v{c+2*j}, -v{c+2*j+1}
        {CVT} v{vD32+12+j}, v{s+2*j}, -v{s+2*j+1}''')
    return p
def b1_loads():
    L = []
    for n in range(7):
        g = Prog()
        if n == 0: g(f's_mul_i32 s58, s{sHC}, 224\nv_lshlrev_b32 v54, 3, v2')
        g(f'buffer_load_dwordx2 {V(vB1+2*n,2)}, v54, {B1}, s58 offen offset:{32*n}')
        L.append(g)
    return L
def g1_reads(st):
    m, i = st >> 2, st & 3; fb = aFR + (st & 1)*36
    L = []
    for n in range(7):
        for hh in range(2):
            L.append(Prog()(f'ds_read_b64_tr_b16 {A(fb+4*n+2*hh,2)}, v{vT+i} offset:{(m&1)*28672 + hh*1792 + n*32}'))
    for t in range(2):
        L.append(Prog()(f'ds_read_b128 {A(fb+28+4*t,4)}, v{vF+i} offset:{m*8192 + t*1024}'))
    if m == 1: L[-1](f'v_add_u32 v{vT+i}, 57344, v{vT+i}')
    return L
def g1_mfmas(st):
    m, i = st >> 2, st & 3; fb = aFR + (st & 1)*36
    p = Prog()
    xf = lambda tt: A(aX + (tt*16+st)*4, 4)
    c = lambda r: r if st else '0'
    for tt in range(2):
        p(f'{M16} {A(aSUM+4*tt,4)}, {V(vONE,4)}, {xf(tt)}, {c(A(aSUM+4*tt,4))}')
        p(f'{M16} {A(aSQ+4*tt,4)}, {xf(tt)}, {xf(tt)}, {c(A(aSQ+4*tt,4))}')
    for n in range(7):
        for tt in range(2):
            d = V(vHID + (2*n+tt)*4, 4)
            p(f'{M16} {d}, {A(fb+4*n,4)}, {xf(tt)}, {c(d)}')
        if i == 0: p(f'{M16} {A(aCS+4*n,4)}, {V(vONE,4)}, {A(fb+4*n,4)}, {c(A(aCS+4*n,4))}')
    for t in range(2):
        for tt in range(2):
            d = V(vXF + (2*t+tt)*4, 4)
            p(f'{M16} {d}, {xf(tt)}, {A(fb+28+4*t,4)}, {c(d)}')
    return p
def g1_main(loads, every, hook=None):
    p = Prog()
    p.wvm('dma0'); p.wds()
    for g in g1_reads(0): p.add(g)
    for st in range(16):
        mf = g1_mfmas(st)
        if st < 15:
            rd = g1_reads(st+1)
            pre = Prog(); pre.wds()
            if (st & 3) == 3: pre.wvm(f'dma{(st+1)>>2}')
            if (st & 3) == 0:
                pre('s_barrier')
                if hook and st == 0: pre.add(hook)
            rd[0] = pre.add(rd[0])
            mf, rest = weave(mf, rd, start=3, pred=ismfma); assert not rest.l
        if st == 13:
            cs = Prog()
            cs(f'v_lshlrev_b32 v55, 11, v2\nv_lshl_add_u32 v55, v1, 2, v55\nv_add_u32 v55, {L_XP}, v55')
            for n in range(7): cs(f'ds_add_f32 v55, a{aCS+4*n} offset:{64*n}')
            mf, rest = weave(mf, cs, start=8, pred=ismfma); mf.add(rest)
        p.add(mf)
    p, rest = weave(p, loads, start=0, every=every, pred=ismfma)
    assert not rest.l, len(rest.l)
    return p
vRS, vNM = 12, 14
def g1_stats_z():
    p = Prog(); t = vTMP
    p(f'''v_lshrrev_b32 v{t}, 2, v1
    v_lshl_add_u32 v{t}, v{t}, 4, v1
    v_lshlrev_b32 v{t}, 2, v{t}
    v_lshlrev_b32 v{t+1}, 4, v2''')
    for tt in range(2):
        q = t+4+4*tt
        for r in range(4): p(f'v_accvgpr_read_b32 v{q+r}, a{aSQ+4*tt+r}')
        p(f'''v_cndmask_b32 v{q}, v{q}, v{q+1}, s[76:77]
        v_cndmask_b32 v{q}, v{q}, v{q+2}, s[78:79]
        v_cndmask_b32 v{q}, v{q}, v{q+3}, s[80:81]
        ds_bpermute_b32 v{q}, v{t}, v{q}
        v_accvgpr_read_b32 v{q+1}, a{aSUM+4*tt}
        v_mul_f32 v{q+1}, {fx(1/512)}, v{q+1}
        v_mul_f32 v{q+2}, v{q+1}, v{q+1}''')
    p(f'''s_cmp_eq_u32 s{sHC}, 15
    s_cselect_b32 s52, 15, 16
    v_cmp_eq_u32 vcc, s52, v1
    v_mov_b32 v{t+2}, {fx(2.0**-19)}
    v_mov_b32 v{t+3}, {fx(2.0**-20)}
    v_cndmask_b32 v{t+2}, v{t+2}, v{t+3}, vcc''')
    for tt in range(2):
        q = t+4+4*tt
        p(f'''v_mul_f32 v{q}, {fx(1/512)}, v{q}
        v_sub_f32 v{q}, v{q}, v{q+2}
        v_max_f32 v{q}, 0, v{q}
        v_add_f32 v{q+2}, {fx(1e-5)}, v{q}
        v_rsq_f32 v{q+2}, v{q+2}''')
        for r in range(4): p(f'ds_bpermute_b32 v{t+12+4*tt+r}, v{t+1}, v{q+2} offset:{4*r}')
    for tt in range(2):
        q = t+4+4*tt
        p(f'''v_mul_f32 v{q}, v{q}, v{q+2}
        v_fmaak_f32 v{q}, v{q}, v{q+2}, {fx(1e-5)}
        v_rsq_f32 v{q}, v{q}
        v_mul_f32 v{vRS+tt}, v{q}, v{q+2}
        v_mul_f32 v{vNM+tt}, v{vRS+tt}, -v{q+1}''')
    for k in range(0, 8, 2):
        p(f'v_pk_mul_f32 {V(t+12+k,2)}, {V(t+12+k,2)}, {V(t+2,2)} op_sel_hi:[1,0]')
    for tq in range(2):
        for k in range(0, 8, 2):
            p(f'v_pk_mul_f32 {V(vXF+8*tq+k,2)}, {V(vXF+8*tq+k,2)}, {V(t+12+k,2)}')
    br, bi, bn = t, t+4, t+8
    for k in range(4):
        p(f'''{CVT} v{br+k}, v{vXF+2*k}, v{vXF+2*k+1}
        {CVT} v{bi+k}, v{vXF+8+2*k}, v{vXF+8+2*k+1}
        {CVT} v{bn+k}, -v{vXF+2*k}, -v{vXF+2*k+1}''')
    z = vXF
    for ct in range(2):
        p(f'{M16} {V(z+8*ct,4)}, {V(vD32+8*ct,4)}, {V(br,4)}, 0\n{M16} {V(z+8*ct+4,4)}, {V(vD32+8*ct,4)}, {V(bi,4)}, 0')
    for ct in range(2):
        p(f'{M16} {V(z+8*ct,4)}, {V(vD32+8*ct+4,4)}, {V(bi,4)}, {V(z+8*ct,4)}\n{M16} {V(z+8*ct+4,4)}, {V(vD32+8*ct+4,4)}, {V(bn,4)}, {V(z+8*ct+4,4)}')
    p(f'''s_lshl2_add_u32 s52, s{sW}, {L_ZT}
    v_lshlrev_b32 v{t+12}, 10, v2
    v_lshl_add_u32 v{t+12}, v1, 4, v{t+12}
    v_add_u32 v{t+12}, s52, v{t+12}
    s_lshl_b32 s52, s{sW}, 11
    s_add_u32 s52, s52, {L_ZT}
    v_lshlrev_b32 v{t+13}, 4, v0
    v_add_u32 v{t+13}, s52, v{t+13}
    s_lshl2_add_u32 s52, s{sHC}, s{sW}
    s_lshl_b32 s52, s52, 7
    s_add_u32 s52, s52, s{sRB}
    s_lshl_b32 s52, s52, 8
    s_add_u32 s59, s52, {Z_OFF}
    s_add_u32 s58, s59, 16384
    v_lshlrev_b32 v{t+14}, 12, v2
    v_lshl_add_u32 v{t+14}, v1, 4, v{t+14}''')
    for ct in range(2):
        for r in range(4):
            p(f'{CVT} v{t+4*ct+r}, v{z+8*ct+r}, v{z+8*ct+4+r}\nds_write_b32 v{t+12}, v{t+4*ct+r} offset:{ct*4096+r*256}')
    p.wds(); p('s_barrier')
    q = Prog()
    q(f'ds_read_b128 {V(t,4)}, v{t+13}\nds_read_b128 {V(t+4,4)}, v{t+13} offset:1024')
    q(f'buffer_store_dwordx4 {V(t,4)}, v{t+14}, {WS}, s59 offen sc1\nbuffer_store_dwordx4 {V(t+4,4)}, v{t+14}, {WS}, s58 offen sc1', 'zst')
    return p, q
def g1_gelu():
    K0 = -2*math.log2(math.e)*math.sqrt(2/math.pi); K1 = K0*0.044715
    t = vTMP + 8
    pre = Prog()
    pre(f'''s_mov_b32 s74, {fx(K1)}
    v_mov_b32 v16, {fx(K0)}
    v_lshlrev_b32 v17, 4, v2
    s_lshl_b32 s52, s{sW}, 11
    s_add_u32 s52, s52, {L_XP}
    v_add_u32 v17, s52, v17
    v_lshlrev_b32 v18, 4, v0
    s_lshl2_add_u32 s52, s{sRB}, s{sW}
    s_mul_i32 s52, s52, 112
    s_mul_i32 s53, s{sHC}, 7
    s_add_u32 s52, s52, s53
    s_lshl_b32 s75, s52, 10
    s_add_u32 s57, s75, 4096
    ds_read_b128 {V(t,4)}, v17''')
    L = []
    for n in range(7):
        p = Prog(); cs = t + 4*(n & 1); bu = t+8; u = t+12; e = t+16; o = t+20
        if n < 6: p(f'ds_read_b128 {V(t+4*((n+1)&1),4)}, v17 offset:{64*(n+1)}')
        for k in range(2):
            p(f'v_lshlrev_b32 v{bu+2*k}, 16, v{vB1+2*n+k}\nv_and_b32 v{bu+2*k+1}, 0xffff0000, v{vB1+2*n+k}')
        for tt in range(2):
            h = vHID + (2*n+tt)*4
            sel = 'op_sel:[0,1,0] op_sel_hi:[1,1,1]' if tt else 'op_sel_hi:[1,0,1]'
            for k in (0, 2): p(f'v_pk_fma_f32 {V(u+k,2)}, {V(cs+k,2)}, {V(vNM,2)}, {V(bu+k,2)} {sel}')
            for k in (0, 2): p(f'v_pk_fma_f32 {V(u+k,2)}, {V(h+k,2)}, {V(vRS,2)}, {V(u+k,2)} {sel}')
            for k in (0, 2): p(f'v_pk_mul_f32 {V(e+k,2)}, {V(u+k,2)}, {V(u+k,2)}')
            for k in (0, 2): p(f'v_pk_fma_f32 {V(e+k,2)}, {V(e+k,2)}, s[74:75], v[16:17] op_sel_hi:[1,0,0]')
            for k in (0, 2): p(f'v_pk_mul_f32 {V(e+k,2)}, {V(e+k,2)}, {V(u+k,2)}')
            for k in range(4): p(f'v_exp_f32 v{e+k}, v{e+k}')
            for k in (0, 2): p(f'v_pk_add_f32 {V(e+k,2)}, {V(e+k,2)}, 1.0 op_sel_hi:[1,0]')
            for k in range(4): p(f'v_rcp_f32 v{e+k}, v{e+k}')
            for k in (0, 2): p(f'v_pk_mul_f32 {V(u+k,2)}, {V(u+k,2)}, {V(e+k,2)}')
            hh = vHID + 8*n
            for k in range(2): p(f'{CVT} v{hh+2*tt+k}, v{u+2*k}, v{u+2*k+1}')
        hh = vHID + 8*n
        p(f'v_permlane16_swap_b32 v{hh}, v{hh+2}\nv_permlane16_swap_b32 v{hh+1}, v{hh+3}')
        p(f'buffer_store_dwordx4 {V(hh,4)}, v18, {WS}, s{75 if n < 4 else 57} offen offset:{(n&3)*1024} sc1', 'hst')
        L.append(p)
    return pre, L
```

```python
from k_common import *
vACC, vG, vRING, vHC = 56, 120, 184, 248
vW2O, vW2R, vHO = 4, 8, 10
NSLOT = 9
sROT, sLB = 65, 66
def grp_soff(p, gam, dst, mul16):
    p(f's_add_u32 s{dst}, s{sROT}, {gam*2048}\ns_cmp_ge_u32 s{dst}, 28672\ns_cselect_b32 s53, 28672, 0\ns_sub_u32 s{dst}, s{dst}, s53')
    if mul16: p(f's_lshl_b32 s{dst}, s{dst}, 4')
def w2_addr(t):
    p = Prog()
    p(f'''s_and_b32 s52, s{sBP}, 3
    s_lshl1_add_u32 s52, s52, s{sCB}
    s_cmp_ge_u32 s52, 7
    s_cselect_b32 s53, 7, 0
    s_sub_u32 s52, s52, s53
    s_lshl_b32 s{sROT}, s52, 12
    s_mul_i32 s{sLB}, s{sW}, 36864
    s_mul_i32 s52, s{sW}, {448*1024}
    s_lshl_b32 s53, s{sCB}, 7
    s_add_u32 s52, s52, s53
    v_lshrrev_b32 v{t}, 3, v0
    v_and_b32 v{t+1}, 7, v0
    v_and_b32 v{t+2}, 1, v2
    v_lshlrev_b32 v{t+2}, 2, v{t+2}
    v_xor_b32 v{t+1}, v{t+1}, v{t+2}
    v_lshlrev_b32 v{t}, 10, v{t}
    v_lshl_add_u32 v{t}, v{t+1}, 4, v{t}
    v_add_u32 v{vW2O}, s52, v{t}''')
    for q in range(1, 4): p(f'v_add_u32 v{vW2O+q}, {q*7168}, v{vW2O}')
    p(f'''v_lshrrev_b32 v{t}, 2, v1
    v_lshrrev_b32 v{t+1}, 1, v2
    v_lshl_add_u32 v{t+1}, v{t+1}, 3, v{t}
    v_lshlrev_b32 v{t+1}, 7, v{t+1}
    v_lshrrev_b32 v{t}, 1, v{t}
    s_and_b32 s52, s{sW}, 1
    v_xor_b32 v{t}, s52, v{t}
    v_lshl_add_u32 v{t+1}, v{t}, 6, v{t+1}
    v_and_b32 v{t}, 1, v1
    v_lshl_add_u32 v{t+1}, v{t}, 5, v{t+1}
    v_lshl_add_u32 v{t+1}, v{t+2}, 2, v{t+1}
    v_and_b32 v{t}, 2, v1
    v_lshl_add_u32 v{t+1}, v{t}, 2, v{t+1}
    v_add_u32 v{vW2R}, s{sLB}, v{t+1}
    v_xor_b32 v{vW2R+1}, 64, v{vW2R}''')
    p(f'''s_lshr_b32 s52, s{sW}, 1
    s_lshl1_add_u32 s52, s{sBP}, s52
    s_xor_b32 s53, s52, 1
    s_mul_i32 s54, s{sW}, 28672
    s_mul_i32 s52, s52, 114688
    s_mul_i32 s53, s53, 114688
    s_add_u32 s52, s52, s54
    s_add_u32 s53, s53, s54
    v_lshlrev_b32 v{t}, 4, v0
    v_add_u32 v{vHO}, s52, v{t}
    v_add_u32 v{vHO+1}, s53, v{t}''')
    return p
def w2_dma(gam):
    L = []
    for q in range(4):
        g = Prog()
        if q == 0:
            grp_soff(g, gam, 67, True)
            g(f's_add_u32 m0, s{sLB}, {(gam % NSLOT)*4096}')
        g(f'buffer_load_dwordx4 v{vW2O+q}, {W2}, s67 offen offset:{q*1024} lds', f'w2d{gam}')
        L.append(g)
    return L
def w2_reads(gam):
    L = []
    for u in range(2):
        for ds in range(2):
            for hh in range(2):
                g = Prog()
                if not L: g.wvm(f'w2d{gam}')
                g(f'ds_read_b64_tr_b16 {A(((2*gam+u)*2+ds)*4+2*hh,2)}, v{vW2R+ds} offset:{(gam%NSLOT)*4096+u*2048+hh*512}')
                L.append(g)
    return L
NR = 16
def h_loads():
    L = []
    for k in range(56):
        gam, u, bs = k >> 2, (k >> 1) & 1, k & 1
        g = Prog()
        if k % 4 == 0: grp_soff(g, gam, 68, False)
        g(f'buffer_load_dwordx4 {V(vRING+4*(k%NR),4)}, v{vHO+bs}, {WS}, s68 offen offset:{u*1024} sc1')
        L.append(g)
    return L
def g2_mfmas():
    p = Prog()
    for k in range(56):
        t, bs = k >> 1, k & 1
        for ds in range(2):
            d = V(vACC + (2*bs+ds)*16, 16)
            p(f'{M32} {d}, {A((t*2+ds)*4,4)}, {V(vRING+4*(k%NR),4)}, {d if t else 0}')
    return p
def g_consts(t):
    p = Prog()
    df, kf, ang, c, s = t, t+1, t+2, t+4, t+8
    p(f'''s_lshl_b32 s54, s{sW}, 6
    s_add_u32 s54, s54, 1
    v_lshlrev_b32 v{kf}, 2, v2
    v_add_u32 v{kf}, s54, v{kf}
    v_cvt_f32_u32 v{kf}, v{kf}
    s_lshl_b32 s54, s{sCB}, 6
    v_add_u32 v{df}, s54, v1
    v_cvt_f32_u32 v{df}, v{df}
    v_mul_f32 v{df}, {fx(1/512)}, v{df}''')
    for dq in range(4):
        p(f'v_mul_f32 v{ang}, v{df}, v{kf}')
        for hq in range(4):
            for i in range(4):
                p(f'v_cos_f32 v{c+i}, v{ang}\nv_sin_f32 v{s+i}, v{ang}')
                if i < 3: p(f'v_add_f32 v{ang}, v{ang}, v{df}')
                elif hq < 3: p(f'v_fmamk_f32 v{ang}, v{df}, {fx(13.0)}, v{ang}')
                elif dq < 3: p(f'v_add_f32 v{df}, {fx(1/32)}, v{df}')
            o = vG + (hq*4+dq)*4
            p(f'{CVT} v{o}, v{c}, v{c+1}\n{CVT} v{o+1}, v{c+2}, v{c+3}\n{CVT} v{o+2}, -v{s}, -v{s+1}\n{CVT} v{o+3}, -v{s+2}, -v{s+3}')
    return p
def h_consts(t):
    p = Prog()
    af, ang, c, s = t, t+1, t+2, t+3
    p(f'''v_and_b32 v{af}, 31, v0
    v_cvt_f32_u32 v{af}, v{af}
    v_lshrrev_b32 v{ang}, 5, v0
    v_cvt_f32_u32 v{ang}, v{ang}
    v_mul_f32 v{af}, {fx(1/32)}, v{af}
    v_add_f32 v{ang}, v{ang}, v{ang}
    v_mul_f32 v{ang}, v{ang}, v{af}''')
    for kk in range(2):
        for tq in range(4):
            pp = 8*(tq >> 1) + 4*kk + (tq & 1)
            if pp: p(f'v_fmamk_f32 v{c}, v{af}, {fx(float(pp))}, v{ang}\nv_sin_f32 v{s}, v{c}\nv_cos_f32 v{c}, v{c}')
            else:
                p(f'''v_sin_f32 v{s}, v{ang}
                v_and_b32 v{c}, 1, v0
                v_lshlrev_b32 v{c}, 31, v{c}
                v_xor_b32 v{c}, -1.0, v{c}
                v_cmp_gt_u32 vcc, 32, v0
                v_cndmask_b32 v{s}, v{s}, v{c}, vcc
                v_cos_f32 v{c}, v{ang}''')
            p(f'{CVT} v{vHC+4*kk+tq}, v{c}, -v{s}')
    return p
def y_loads():
    L = []
    g = Prog()
    g(f'''s_lshl_b32 s52, s{sBP}, 16
    s_lshl_b32 s53, s{sW}, 13
    s_add_u32 s52, s52, s53
    s_add_u32 s69, s52, {Y_OFF}
    v_lshlrev_b32 v12, 6, v1
    v_lshl_add_u32 v12, v2, 4, v12''')
    for hq in range(4):
        for b in range(2):
            g(f's_add_u32 s70, s69, {b*32768 + hq*2048}')
            for rt in range(2):
                g(f'buffer_load_dwordx4 {A(((hq*2+b)*2+rt)*4,4)}, v12, {WS}, s70 offen offset:{rt*1024} sc1')
                L.append(g); g = Prog()
    return L
vXX, vBB = 20, 28
def fin_loads():
    g = Prog()
    g(f'''s_lshr_b32 s52, s{sW}, 1
    s_lshl1_add_u32 s52, s{sBP}, s52
    s_lshl_b32 s52, s52, 10
    s_and_b32 s53, s{sW}, 1
    s_lshl1_add_u32 s53, s{sCB}, s53
    s_lshl_b32 s72, s53, 6
    s_add_u32 s71, s52, s72
    v_and_b32 v13, 32, v0
    v_and_b32 v14, 31, v0
    v_lshl_add_u32 v14, v14, 16, v13''')
    L = []
    for k in range(2):
        g(f'buffer_load_dwordx4 {V(vXX+4*k,4)}, v14, {X}, s71 offen offset:{16*k}'); L.append(g); g = Prog()
        g(f'buffer_load_dwordx4 {V(vBB+4*k,4)}, v13, {B2}, s72 offen offset:{16*k}'); L.append(g); g = Prog()
    return L
def r_mfmas():
    p = Prog()
    for hq in range(4):
        for b in range(2):
            for rt in range(2):
                for dq in range(4):
                    d = V(vRING + ((b*4+dq)*2+rt)*4, 4)
                    p(f'{M16} {d}, {A(((hq*2+b)*2+rt)*4,4)}, {V(vG+(hq*4+dq)*4,4)}, {d if hq else 0}')
    return p
def g_part_writes():
    L = []
    g = Prog(); g(f'v_lshlrev_b32 v15, 4, v0\nv_add_u32 v15, s{sLB}, v15')
    for sl in range(1, 4):
        for k in range(4):
            g(f'ds_write_b128 v15, {V(vACC+16*sl+4*k,4)} offset:{(sl-1)*4096+k*1024}'); L.append(g); g = Prog()
    return L
def fin_addr(t):
    p = Prog()
    p(f'''v_and_b32 v{t}, 3, v0
    v_bfe_u32 v{t+1}, v0, 3, 2
    v_lshl_add_u32 v{t}, v{t+1}, 2, v{t}
    v_lshlrev_b32 v{t}, 4, v{t}
    v_bfe_u32 v{t+1}, v0, 2, 1
    v_lshl_add_u32 v{t}, v{t+1}, 10, v{t}
    v_lshrrev_b32 v{t+1}, 5, v0
    v_lshl_add_u32 v{t}, v{t+1}, 8, v{t}
    s_lshl_b32 s54, s{sW}, 11
    s_add_u32 s54, s54, 12288
    v_add_u32 v16, s54, v{t}
    v_add_u32 v3, 73728, v16
    v_lshlrev_b32 v{t}, 4, v0''')
    for sl in range(1, 4):
        p(f's_xor_b32 s54, s{sW}, {sl}\ns_mul_i32 s54, s54, 36864\ns_add_u32 s54, s54, {(sl-1)*4096}\nv_add_u32 v{16+sl}, s54, v{t}')
    return p
def finish():
    p = Prog()
    for k in range(8):
        r = vRING + 8*k
        for j in range(4): p(f'{CVT} v{r+j}, v{r+2*j}, v{r+2*j+1}')
        p(f'ds_write_b128 v15, {V(r,4)} offset:{12288+1024*k}')
    p.wds(); p('s_barrier')
    for ws in range(4):
        for kk in range(2):
            p(f'ds_read_b128 {A((ws*2+kk)*4,4)}, v{3 if ws >= 2 else 16} offset:{(ws&1)*36864+kk*512}')
    for k in range(4):
        for sl in range(1, 4):
            p(f'ds_read_b128 {V(vACC+16*sl+4*k,4)}, v{16+sl} offset:{k*1024}')
    S = vG
    q = Prog()
    for k in range(8): q(f'{M32} {V(S,16)}, {A(4*k,4)}, {V(vHC+4*(k&1),4)}, {V(S,16) if k else 0}')
    f = Prog(); bu = vG+16; e = vG+32
    for k in range(8): f(f'v_lshlrev_b32 v{bu+2*k}, 16, v{vBB+k}\nv_and_b32 v{bu+2*k+1}, 0xffff0000, v{vBB+k}')
    for k in range(0, 16, 2): f(f'v_pk_add_f32 {V(bu+k,2)}, {V(bu+k,2)}, {V(vACC+k,2)}')
    q, rest = weave(q, f, per=3, pred=ismfma); p.add(q).add(rest)
    p(f's_mov_b32 s74, {fx(-math.log2(math.e))}')
    for k4 in range(0, 16, 4):
        for k in (k4, k4+2): p(f'v_pk_add_f32 {V(vACC+16+k,2)}, {V(vACC+16+k,2)}, {V(vACC+32+k,2)}\nv_pk_add_f32 {V(bu+k,2)}, {V(bu+k,2)}, {V(vACC+48+k,2)}')
        for k in (k4, k4+2): p(f'v_pk_add_f32 {V(bu+k,2)}, {V(bu+k,2)}, {V(vACC+16+k,2)}')
        for k in (k4, k4+2): p(f'v_pk_mul_f32 {V(e+k,2)}, {V(bu+k,2)}, s[74:75] op_sel_hi:[1,0]')
        for k in range(k4, k4+4): p(f'v_exp_f32 v{e+k}, v{e+k}')
        for k in (k4, k4+2): p(f'v_pk_add_f32 {V(e+k,2)}, {V(e+k,2)}, 1.0 op_sel_hi:[1,0]')
        for k in range(k4, k4+4): p(f'v_rcp_f32 v{e+k}, v{e+k}')
        for k in (k4, k4+2): p(f'v_lshlrev_b32 v{vACC+k}, 16, v{vXX+k//2}\nv_and_b32 v{vACC+k+1}, 0xffff0000, v{vXX+k//2}')
        for k in (k4, k4+2): p(f'v_pk_mul_f32 {V(e+k,2)}, {V(e+k,2)}, {V(bu+k,2)}')
        for k in (k4, k4+2): p(f'v_pk_fma_f32 {V(e+k,2)}, {V(e+k,2)}, {V(S+k,2)}, {V(vACC+k,2)}')
        for k in (k4, k4+2): p(f'{CVT} v{vXX+k//2}, v{e+k}, v{e+k+1}')
        if k4 & 4: p(f'buffer_store_dwordx4 {V(vXX+(k4>>3)*4,4)}, v14, {OUT}, s71 offen offset:{(k4>>3)*16}')
    return p
```

```python
from k_common import *
vFW, vIV, vTMP = 128, 192, 224
vWV, vXA, aZ = 112, 24, 224
def p2_ids():
    p = Prog()
    p(f'''s_sub_u32 s61, 32, s{sCP}
    s_cmp_eq_u32 s{sCP}, 0
    s_cselect_b32 s61, 16, s61
    s_cmp_lt_u32 s{sW}, 2
    s_cselect_b32 s62, s{sCP}, s61''')
    return p
def p2_fwd_consts(t=vTMP):
    p = Prog()
    kf, ang, c, s = t, t+1, t+2, t+3
    p(f'''s_and_b32 s54, s{sW}, 1
    s_lshl_b32 s54, s54, 10
    s_add_u32 s54, s54, s62
    v_lshlrev_b32 v{kf}, 5, v1
    v_add_u32 v{kf}, s54, v{kf}
    v_cvt_f32_u32 v{kf}, v{kf}
    v_cvt_f32_u32 v{ang}, v2
    v_mul_f32 v{kf}, {fx(1/2048)}, v{kf}
    v_mul_f32 v{ang}, 4.0, v{ang}
    v_mul_f32 v{ang}, v{ang}, v{kf}''')
    for q in range(4):
        for j in range(4):
            p(f'v_cos_f32 v{c}, v{ang}\nv_sin_f32 v{s}, v{ang}')
            if j < 3: p(f'v_add_f32 v{ang}, v{ang}, v{kf}')
            elif q < 3: p(f'v_fmamk_f32 v{ang}, v{kf}, {fx(13.0)}, v{ang}')
            C, S, nC, nS = f'v{c}', f'v{s}', f'-v{c}', f'-v{s}'
            rot = [(C, S, nS), (nS, C, nC), (nC, nS, S), (S, nC, C)][j]
            r = lambda et, ri: vFW + ((et*2+ri)*4+q)*4 + j
            p(f'{CVT} v{r(0,0)}, {C}, {S}\n{CVT} v{r(0,1)}, {nS}, {C}\n{CVT} v{r(1,0)}, {rot[0]}, {rot[1]}\n{CVT} v{r(1,1)}, {rot[2]}, {rot[0]}')
    return p
def p2_inv_consts(t=vTMP):
    p = Prog()
    bf, st, ang, c, s = t, t+1, t+2, t+3, t+4
    p(f'''s_lshl_b32 s54, s{sW}, 4
    v_add_u32 v{bf}, s54, v1
    v_cvt_f32_u32 v{bf}, v{bf}
    v_mul_f32 v{st}, {fx(1/64)}, v{bf}
    v_mul_f32 v{bf}, {fx(1/2048)}, v{bf}''')
    for cs in range(2):
        p(f'''v_lshlrev_b32 v{ang}, 7, v2
        v_add_u32 v{ang}, s{61 if cs else sCP}, v{ang}
        v_cvt_f32_u32 v{ang}, v{ang}
        v_mul_f32 v{ang}, v{ang}, v{bf}''')
        for jj in range(2):
            for r in range(4):
                p(f'v_cos_f32 v{c}, v{ang}\nv_sin_f32 v{s}, v{ang}')
                if r < 3: p(f'v_add_f32 v{ang}, v{ang}, v{st}')
                elif jj == 0: p(f'v_fmamk_f32 v{ang}, v{st}, {fx(13.0)}, v{ang}')
                R = lambda ri: vIV + ((cs*2+ri)*2+jj)*4 + r
                p(f'{CVT} v{R(0)}, v{c}, -v{s}\n{CVT} v{R(1)}, v{s}, v{c}')
    return p
def p2_wloads():
    L = []
    g = Prog()
    g(f'''s_and_b32 s52, s{sW}, 1
    s_lshl_b32 s52, s52, 10
    s_add_u32 s52, s52, s62
    s_mul_i32 s52, s52, 514
    s_lshl_b32 s53, s{sHC2}, 5
    s_add_u32 s63, s52, s53
    v_mul_u32_u24 v19, {128*514}, v2
    v_lshl_add_u32 v19, v1, 1, v19''')
    for k in range(8):
        et, r = k >> 2, k & 3
        g(f'v_mov_b32 v{vWV+k}, 0\nv_mov_b32 v{vWV+8+k}, 0\ns_add_u32 s64, s63, {(16*et+r)*32*514}')
        g(f'buffer_load_short_d16_hi v{vWV+k}, v19, {WR}, s64 offen offset:2')
        g(f'buffer_load_short_d16_hi v{vWV+8+k}, v19, {WI}, s64 offen offset:2')
        L.append(g); g = Prog()
    return L
def p2_zloads():
    p = Prog()
    p(f'''s_lshl_b32 s52, s{sHC2}, 5
    s_add_u32 s52, s52, s62
    s_lshl_b32 s52, s52, 12
    s_add_u32 s52, s52, {Z_OFF}
    v_lshlrev_b32 v18, 4, v0''')
    for q in range(4): p(f'buffer_load_dwordx4 {A(aZ+4*q,4)}, v18, {WS}, s52 offen offset:{1024*q} sc1')
    return p
def p2_fwd():
    p = Prog(); t = vTMP
    for q in range(4):
        for k in range(4):
            d = V(vXA+4*k, 4)
            p(f'{M16} {d}, {V(vFW+(k*4+q)*4,4)}, {A(aZ+4*q,4)}, {d if q else 0}')
    p(f'''s_lshl_b32 s52, s{sW}, 11
    s_add_u32 s52, s52, {L_XP}
    v_add_u32 v{t+16}, s52, v18
    v_add_u32 v{t+17}, {L_XP}, v18''')
    for et in range(2):
        xr, xi, wr, wi = vXA+8*et, vXA+8*et+4, vWV+4*et, vWV+8+4*et
        for k in (0, 2):
            p(f'v_pk_mul_f32 {V(t+k,2)}, {V(xr+k,2)}, {V(wr+k,2)}\nv_pk_mul_f32 {V(t+4+k,2)}, {V(xr+k,2)}, {V(wi+k,2)}')
        for k in (0, 2):
            p(f'v_pk_fma_f32 {V(t+k,2)}, {V(xi+k,2)}, {V(wi+k,2)}, {V(t+k,2)} neg_lo:[1,0,0] neg_hi:[1,0,0]')
            p(f'v_pk_fma_f32 {V(t+4+k,2)}, {V(xi+k,2)}, {V(wr+k,2)}, {V(t+4+k,2)}')
        for r in range(4): p(f'{CVT} v{t+8+4*et+r}, v{t+r}, v{t+4+r}')
        p(f'ds_write_b128 v{t+16}, {V(t+8+4*et,4)} offset:{1024*et}')
    p.wds(); p('s_barrier')
    return p
def p2_inv(lab):
    p = Prog(); t = vTMP; va = vFW
    for k in range(8): p(f'ds_read_b128 {A(aZ+4*k,4)}, v{t+17} offset:{1024*k}')
    acc = lambda cs, ri, hi: va + ((cs*2+ri)*2+hi)*4
    for cs in range(2):
        for jj in range(4):
            for ri in range(2):
                d = V(acc(cs, ri, jj >> 1), 4)
                p(f'{M16} {d}, {A(aZ+(cs*4+jj)*4,4)}, {V(vIV+((cs*2+ri)*2+(jj&1))*4,4)}, {d if jj&1 else 0}')
    p(f'''v_and_b32 v{t}, 1, v1
    v_lshlrev_b32 v{t}, 31, v{t}
    v_or_b32 v{t}, 1.0, v{t}
    s_lshl_b32 s52, s{sW}, 8
    s_add_u32 s52, s52, s{sHC2}
    s_lshl_b32 s52, s52, 4
    s_add_u32 s52, s52, s{sCP}
    s_lshl_b32 s52, s52, 7
    s_add_u32 s64, s52, {Y_OFF}
    v_lshlrev_b32 v{t+2}, 15, v1
    v_lshl_add_u32 v{t+2}, v2, 4, v{t+2}''')
    for cs in range(2):
        for ri in range(2):
            for k in (0, 2):
                p(f'v_pk_fma_f32 {V(acc(cs,ri,0)+k,2)}, {V(acc(cs,ri,1)+k,2)}, {V(t,2)}, {V(acc(cs,ri,0)+k,2)} op_sel_hi:[1,0,1]')
    vr, vi, wr, wi = acc(0,0,0), acc(0,1,0), acc(1,0,0), acc(1,1,0)
    p(f's_cmp_eq_u32 s{sCP}, 0\ns_cbranch_scc1 {lab}')
    tt = va + 4
    for k in (0, 2):
        p(f'''v_pk_add_f32 {V(tt+k,2)}, {V(vi+k,2)}, {V(wi+k,2)} neg_lo:[0,1] neg_hi:[0,1]
        v_pk_add_f32 {V(vi+k,2)}, {V(vi+k,2)}, {V(wi+k,2)}
        v_pk_add_f32 {V(wi+k,2)}, {V(wr+k,2)}, {V(vr+k,2)} neg_lo:[0,1] neg_hi:[0,1]
        v_pk_add_f32 {V(vr+k,2)}, {V(vr+k,2)}, {V(wr+k,2)}
        v_mov_b32 v{wr+k}, v{tt+k}
        v_mov_b32 v{wr+k+1}, v{tt+k+1}''')
    p(f'{lab}:')
    for rho, (u, v) in enumerate(((vr, vi), (wr, wi))):
        o = t + 4 + 4*rho
        p(f'{CVT} v{o}, v{u}, v{u+1}\n{CVT} v{o+1}, v{u+2}, v{u+3}\n{CVT} v{o+2}, v{v}, v{v+1}\n{CVT} v{o+3}, v{v+2}, v{v+3}')
        p(f'buffer_store_dwordx4 {V(o,4)}, v{t+2}, {WS}, s64 offen offset:{64*rho} sc1', 'yst')
    return p
```

```python
import re
REG = re.compile(r'(?<![\w.])([vas])(?:(\d+)|\[(\d+):(\d+)\])(?![\w])')
TRANS = ('v_exp_f32','v_log_f32','v_rcp_f32','v_rsq_f32','v_sqrt_f32','v_sin_f32','v_cos_f32')
def regs(s):
    out = set()
    for m in REG.finditer(s):
        k = m.group(1)
        if m.group(2) is not None: out.add((k, int(m.group(2))))
        else:
            for i in range(int(m.group(3)), int(m.group(4))+1): out.add((k, i))
    if re.search(r'\bvcc\b', s): out.add(('s', 'vcc'))
    if re.search(r'\bm0\b', s): out.add(('s', 'm0'))
    if re.search(r'\bexec\b', s): out.add(('s', 'exec'))
    return out
def split_ops(rest):
    ops, depth, cur = [], 0, ''
    for ch in rest:
        if ch == '[': depth += 1
        if ch == ']': depth -= 1
        if ch == ',' and depth == 0: ops.append(cur.strip()); cur = ''
        else: cur += ch
    if cur.strip(): ops.append(cur.strip())
    return ops
class Ins:
    def __init__(self, text, tag=None):
        self.text = text.strip(); self.tag = tag
        t = self.text
        self.kind = None; self.w = set(); self.r = set(); self.passes = 0
        self.A = self.B = self.C = set()
        if t.startswith('@'):
            self.kind = 'pseudo'; return
        if t.endswith(':'):
            self.kind = 'label'; return
        p = t.split(None, 1); op = p[0]; self.op = op
        ops = split_ops(p[1]) if len(p) > 1 else []
        R = [regs(o) for o in ops]
        U = lambda l: set().union(*l) if l else set()
        if op.startswith('v_mfma'):
            self.kind = 'mfma'; self.passes = 8 if '32x32' in op else 4
            self.w = R[0]; self.A, self.B, self.C = R[1], R[2], R[3]; self.r = U(R[1:])
        elif op.startswith('v_'):
            self.kind = 'valu'
            base = re.sub(r'_e(32|64)$', '', op)
            self.trans = base in TRANS
            if 'swap' in op: self.w = U(R); self.r = U(R)
            elif op.startswith('v_nop'): pass
            else:
                self.w = R[0]; self.r = U(R[1:])
                if base.startswith(('v_fmac', 'v_mac', 'v_dot2c', 'v_pk_fmac')): self.r |= R[0]
                if base.startswith('v_cndmask') and len(ops) == 3: self.r.add(('s', 'vcc'))
                if base.startswith(('v_add_co', 'v_sub_co')): self.w |= R[1]
                if base.startswith('v_addc_co'): self.w |= R[1]
        elif op.startswith(('buffer_load', 'global_load')):
            self.kind = 'vmem'
            if re.search(r'\blds\b', t): self.r = U(R) | {('s', 'm0')}; self.dma = True
            else:
                self.w = R[0]; self.r = U(R[1:])
                if 'd16' in op: self.r |= R[0]
        elif op.startswith(('buffer_store', 'global_store', 'buffer_atomic')):
            self.kind = 'vmem'; self.r = U(R); self.store = True
            self.wide = R[0] if ('x4' in op or 'x3' in op) and op.startswith('buffer') else set()
        elif op.startswith('ds_'):
            self.kind = 'ds'
            if op.startswith(('ds_read', 'ds_bpermute', 'ds_permute', 'ds_swizzle')): self.w = R[0]; self.r = U(R[1:])
            else: self.r = U(R)
        elif op.startswith(('s_load', 's_memrealtime', 's_memtime')):
            self.kind = 'smem'; self.w = R[0]; self.r = U(R[1:])
        elif op.startswith('s_'):
            self.kind = 'salu'
            if op.startswith(('s_cmp', 's_cbranch', 's_branch', 's_waitcnt', 's_nop', 's_barrier', 's_setprio', 's_sleep', 's_endpgm')): self.r = U(R)
            else:
                self.w = R[0]; self.r = U(R[1:])
                if 'saveexec' in op: self.w |= {('s', 'exec')}
        else: raise ValueError(t)
    def states(self):
        if self.kind in ('label', 'pseudo'): return 0
        if self.kind == 'salu' and self.op == 's_nop': return int(self.text.split()[1]) + 1
        return 1
def need(p, c):
    n = 0
    vw = {x for x in p.w if x[0] != 's'}; sw = {x for x in p.w if x[0] == 's'}
    if p.kind == 'valu':
        if c.kind == 'mfma' and vw & c.r: n = max(n, 2)
        if p.trans and c.kind in ('valu', 'ds', 'vmem') and vw & c.r: n = max(n, 1)
        if c.kind == 'valu':
            if ('permlane' in c.op or 'dpp' in c.text or 'row_' in c.text or 'quad_perm' in c.text) and vw & c.r: n = max(n, 2)
            if c.op.startswith(('v_readlane', 'v_readfirstlane')) and vw & c.r: n = max(n, 1)
            if sw & c.r: n = max(n, 4 if c.op.startswith(('v_readlane', 'v_writelane')) else 2)
            if ('op_sel' in p.text and not p.op.startswith('v_pk') or 'sdwa' in p.text) and vw & (c.r | c.w): n = max(n, 1)
        if c.kind == 'vmem' and sw & c.r: n = max(n, 5)
    if p.kind == 'mfma':
        big = 12 if p.passes == 8 else 8
        if c.kind == 'mfma':
            if vw & (c.A | c.B): n = max(n, big)
            if vw & c.C and not (c.C == vw and c.passes == p.passes): n = max(n, big - 2)
            if vw & c.w and not (c.C == vw and c.passes == p.passes): n = max(n, big - 2)
        elif c.kind in ('valu', 'vmem', 'ds'):
            if vw & (c.r | c.w): n = max(n, big)
            if c.kind == 'valu' and p.C & c.w: n = max(n, 7 if p.passes == 8 else 3)
    if p.kind == 'salu' and ('s', 'm0') in sw and c.kind == 'vmem' and getattr(c, 'dma', False): n = max(n, 1)
    if p.kind == 'vmem' and getattr(p, 'wide', None) and p.wide & c.w: n = max(n, 2 if c.kind in ('valu', 'mfma') else 1)
    return n
class Prog:
    def __init__(self): self.l = []
    def __call__(self, s, tag=None):
        for x in s.strip().split('\n'):
            x = x.split(';')[0].strip()
            if x: self.l.append(Ins(x, tag))
        return self
    def add(self, other): self.l += other.l if isinstance(other, Prog) else other; return self
    def wvm(self, tag): self.l.append(Ins('@wvm ' + tag))
    def wds(self): self.l.append(Ins('@wds'))
    def synced(self): self.l.append(Ins('@synced'))
def weave(main, fill, start=0, every=1, per=1, pred=None):
    m = main.l if isinstance(main, Prog) else main
    f = [[x] for x in fill.l] if isinstance(fill, Prog) else [g.l if isinstance(g, Prog) else g for g in fill]
    out, k, cnt = [], 0, 0
    for x in m:
        out.append(x)
        if x.kind in ('pseudo', 'label'): continue
        if pred is None or pred(x):
            cnt += 1
            if cnt > start and (cnt - start) % every == 0:
                for _ in range(per):
                    if k < len(f): out += f[k]; k += 1
    rest = [y for g in f[k:] for y in g]
    p = Prog(); p.l = out
    q = Prog(); q.l = rest
    return p, q
def finalize(prog, stats=None):
    waited = set(); written = {('v', 0), ('s', 0), ('s', 1), ('s', 2), ('s', 'exec')}
    for x in prog.l:
        if x.kind == 'pseudo' and x.text.startswith('@wvm'): waited.add(x.text.split()[1])
        if x.kind == 'vmem' and x.tag in waited: raise ValueError('tag issued after wait: ' + x.tag)
        u = x.r - written
        if u and not x.text.startswith('v_pk_') : print('UNINIT', x.text, u)
        elif len(u) > 1: print('UNINIT', x.text, u)
        written |= x.w
    out = []
    vm_n = 0; vm_done = 0; ds_n = 0; ds_done = 0
    pend_vm = {}; pend_ds = {}; tags = {}; smem_pend = set()
    def emit_wait(v, d):
        nonlocal vm_done, ds_done, smem_pend
        parts = []
        if v is not None and v > vm_done:
            n = vm_n - v
            if n > 63: n = 63; v = vm_n - 63
            if v > vm_done: parts.append(f'vmcnt({n})'); vm_done = v
        if d is not None and (d > ds_done or d < 0):
            n = ds_n - d if d >= 0 else 0
            if smem_pend: n = 0
            if n > 14: n = 14
            parts.append(f'lgkmcnt({n})'); ds_done = max(ds_done, ds_n - n)
            if n == 0: smem_pend = set()
        if parts: out.append(Ins('s_waitcnt ' + ' '.join(parts)))
    for x in prog.l:
        if x.kind == 'pseudo':
            a = x.text.split()
            if a[0] == '@wvm': emit_wait(tags[a[1]], None)
            elif a[0] == '@wds': emit_wait(None, ds_n if not smem_pend else -1)
            elif a[0] == '@synced': vm_done = vm_n
            continue
        if x.kind == 'label': out.append(x); continue
        touch = x.r | x.w
        v = max([pend_vm[r] for r in touch if r in pend_vm], default=None)
        d = max([pend_ds[r] for r in touch if r in pend_ds], default=None)
        if touch & smem_pend: d = -1
        emit_wait(v, d)
        if x.kind == 'vmem':
            if vm_n - vm_done >= 63: emit_wait(vm_n - 62, None)
            vm_n += 1
            for r in x.w: pend_vm[r] = vm_n
            if x.tag: tags[x.tag] = vm_n
        elif x.kind == 'ds':
            ds_n += 1
            for r in x.w: pend_ds[r] = ds_n
        elif x.kind == 'smem':
            smem_pend |= x.w
        elif x.kind == 'salu' and x.op == 's_waitcnt':
            m = re.search(r'vmcnt\((\d+)\)', x.text)
            if m: vm_done = max(vm_done, vm_n - int(m.group(1)))
            m = re.search(r'lgkmcnt\((\d+)\)', x.text)
            if m and int(m.group(1)) == 0: ds_done = ds_n; smem_pend = set()
        out.append(x)
    res = []
    for x in out:
        if x.kind not in ('label',):
            dist = 0; pad = 0
            for p in reversed(res):
                if dist >= 13: break
                if p.kind == 'label': continue
                pad = max(pad, need(p, x) - dist)
                dist += p.states()
            if pad > 0:
                res.append(Ins(f's_nop {pad-1}'))
                if stats is not None: stats['nops'] = stats.get('nops', 0) + pad
        res.append(x)
    if stats is not None: stats['n'] = len(res)
    return '\n'.join(('' if x.kind == 'label' else '    ') + x.text for x in res) + '\n'
```

```python
from k_common import *
import k_g1 as G1, k_p2 as P2, k_g2 as G2
def k1(diag):
    p = Prog(); prologue(p, 'EX1', diag)
    G1.g1_addr(p)
    L = G1.g1_loads(); L = L[:30] + G1.b1_loads() + L[30:]
    for g in L[:11]: p.add(g)
    p.add(G1.g1_consts()).add(G1.d32_consts())
    for g in L[11:24]: p.add(g)
    stamp(p, 1, diag)
    p.add(G1.g1_main(L[24:], 5))
    stamp(p, 2, diag)
    a, b = G1.g1_stats_z(); p.add(a).add(b)
    stamp(p, 3, diag)
    pre, Lg = G1.g1_gelu(); p.add(pre)
    for g in Lg: p.add(g)
    stamp(p, 4, diag)
    p('s_waitcnt vmcnt(0)'); stamp(p, 5, diag)
    if diag: stamp_out(p, 0, 'EX1')
    p('EX1:'); return p
def k2(diag):
    p = Prog(); prologue(p, 'EX2', diag)
    p.add(P2.p2_ids()).add(P2.p2_zloads())
    for g in P2.p2_wloads(): p.add(g)
    p.add(P2.p2_fwd_consts()).add(P2.p2_inv_consts())
    stamp(p, 1, diag)
    p.add(P2.p2_fwd()).add(P2.p2_inv('CP0'))
    stamp(p, 2, diag)
    p('s_waitcnt vmcnt(0)'); stamp(p, 3, diag)
    if diag: stamp_out(p, 1, 'EX2')
    p('EX2:'); return p
def k3(diag):
    p = Prog(); prologue(p, 'EX3', diag)
    p.add(G2.w2_addr(36))
    for gam in range(9):
        for g in G2.w2_dma(gam): p.add(g)
    for gam in range(14):
        for g in G2.w2_reads(gam): p.add(g)
        if gam + 9 < 14:
            p.wds()
            for g in G2.w2_dma(gam+9): p.add(g)
    stamp(p, 1, diag)
    hl = G2.h_loads()
    for g in hl[:14]: p.add(g)
    m, rest = weave(G2.g2_mfmas(), hl[14:] + G2.y_loads() + G2.fin_loads(), every=2, pred=ismfma)
    c = G2.g_consts(36).add(G2.h_consts(36)).add(G2.fin_addr(36))
    m, rest2 = weave(m, c, per=3, pred=ismfma)
    p.add(m).add(rest).add(rest2)
    stamp(p, 2, diag)
    m, rest = weave(G2.r_mfmas(), G2.g_part_writes(), start=2, every=2, pred=ismfma)
    p.add(m).add(rest)
    stamp(p, 3, diag)
    p.add(G2.finish())
    stamp(p, 4, diag)
    p('s_waitcnt vmcnt(0)'); stamp(p, 5, diag)
    if diag: stamp_out(p, 2, 'EX3')
    p('EX3:'); return p
if __name__ == '__main__':
    diag = len(sys.argv) > 2
    ks = []
    for i, f in enumerate((k1, k2, k3)):
        st = {}
        body = finalize(f(diag), st); print(i, st)
        ks.append(dict(name=f'k{i+1}_kernel', grid=256, block=256, lds=163840, body=body, nfv=512, accum=256))
    open(sys.argv[1], 'w').write(build_file(ks))
```

```python
import sys, struct, math
sys.path.insert(0, 'gen')
from prog import *
from asmlib import build_file
def fx(x): return '0x%08x' % struct.unpack('<I', struct.pack('<f', x))[0]
def V(a, n=1): return f'v{a}' if n == 1 else f'v[{a}:{a+n-1}]'
def A(a, n=1): return f'a{a}' if n == 1 else f'a[{a}:{a+n-1}]'
X, WR, WI, W1, B1, W2, B2, OUT, DBG, WS = [f's[{4+4*i}:{7+4*i}]' for i in range(10)]
sW, sRB, sHC, sCP, sHC2, sBP, sCB, sXOR = range(44, 52)
H_OFF, Z_OFF, Y_OFF, FL_OFF = 0, 8 << 20, 10 << 20, 12 << 20
L_F, L_ZT, L_CS, L_XP = 135168, 151552, 159744, 135168
WST = 33792; W1OFF = [26624, 0, 11264]; XSOFF = [18432, 22528, 7168]; sLB = 66
STAMP_OFF = 128 << 20
M16 = 'v_mfma_f32_16x16x32_bf16'; M32 = 'v_mfma_f32_32x32x16_bf16'
CVT = 'v_cvt_pk_bf16_f32'

def prologue(p, exitl, diag):
    p(f's_cmp_ge_u32 s2, 256\ns_cbranch_scc1 {exitl}')
    if diag:
        for i in range(88, 102): p(f's_mov_b32 s{i}, 0')
        p('s_memrealtime s[86:87]')
    offs = [0, 8, 16, 32, 40, 48, 56, 64, 72, 80]
    size = [2097152, 2048*514, 2048*514, 512*3584, 3584, 1792*1024, 1024, 2097152, 256, 256 << 20]
    order = [0, 3, 9, 4, 5, 1, 2, 6, 7, 8]
    for i in order: p(f's_load_dwordx2 s[{4+4*i}:{5+4*i}], s[0:1], {offs[i]}')
    p(f'''v_lshrrev_b32 v1, 6, v0
    v_and_b32 v0, 63, v0
    s_and_b32 s52, s2, 7
    v_readfirstlane_b32 s{sW}, v1
    s_lshr_b32 s53, s2, 3
    v_and_b32 v1, 15, v0
    v_lshrrev_b32 v2, 4, v0
    s_lshr_b32 s54, s52, 1
    s_and_b32 s55, s53, 3
    s_lshl2_add_u32 s{sRB}, s54, s55
    s_and_b32 s54, s52, 1
    s_lshr_b32 s{sCB}, s53, 2
    s_lshl3_add_u32 s{sHC}, s54, s{sCB}
    s_lshl2_add_u32 s{sBP}, s52, s55
    s_and_b32 s54, s53, 1
    s_lshl1_add_u32 s{sCP}, s52, s54
    s_lshr_b32 s{sHC2}, s53, 1
    s_mul_i32 s{sLB}, s{sW}, {WST}''')
    for i in order: p(f's_mov_b32 s{6+4*i}, {size[i]}\ns_mov_b32 s{7+4*i}, 0x20000')

def stamp(p, i, diag):
    if diag: p(f's_memrealtime s[{86+2*i}:{87+2*i}]')
def stamp_out(p, kidx, lab):
    p(f'''s_waitcnt vmcnt(0) lgkmcnt(0)
    s_cmp_lg_u32 s{sW}, 0
    s_cbranch_scc1 {lab}
    s_lshl_b32 s52, s2, 6
    s_add_u32 s52, s52, {STAMP_OFF + kidx*65536}
    v_mov_b32 v3, s52
    v_cmp_eq_u32 vcc, 0, v0
    s_and_saveexec_b64 s[54:55], vcc''')
    for i in range(8):
        p(f'v_mov_b32 v4, s{86+2*i}\nv_mov_b32 v5, s{87+2*i}\nbuffer_store_dwordx2 v[4:5], v3, {WS}, 0 offen offset:{8*i}\ns_nop 1')
    p('s_waitcnt vmcnt(0)')
def ismfma(x): return x.kind == 'mfma'
```

```python
from k_common import *
vDMA, vT, vF, vONE, vD32, vXO, vXR, vB1, vSG, vHID, vXF, vTMP = 5, 12, 16, 20, 24, 40, 44, 46, 48, 56, 112, 224
aX, aFR, aCS, aSUM, aSQ = 96, 128, 200, 228, 236
def g1_addr(p):
    p(f'''s_add_u32 s52, s{sRB}, s{sHC}
    s_and_b32 s52, s52, 3
    s_lshl2_add_u32 s53, s52, s{sW}
    s_lshl_b32 s{sXOR}, s53, 6
    s_lshl2_add_u32 s54, s{sRB}, s{sW}
    s_lshl_b32 s54, s54, 10
    s_and_b32 s55, s{sW}, 1
    s_lshl_b32 s55, s55, 2
    v_and_b32 v{vTMP}, 7, v0
    v_xor_b32 v{vTMP}, v{vTMP}, v2
    v_xor_b32 v{vTMP}, s55, v{vTMP}
    v_lshrrev_b32 v{vXO}, 3, v0
    v_lshlrev_b32 v{vXO}, 16, v{vXO}
    v_lshl_add_u32 v{vXO}, v{vTMP}, 4, v{vXO}
    v_add_u32 v{vXO}, s54, v{vXO}
    v_xor_b32 v{vXO+1}, 64, v{vXO}
    v_add_u32 v{vXO+2}, {16*65536-2048}, v{vXO}
    v_add_u32 v{vXO+3}, {24*65536-3072}, v{vXO+1}
    v_add_u32 v{vXO+1}, {8*65536-1024}, v{vXO+1}
    s_and_b32 s59, s{sXOR}, 0x380
    s_mul_i32 s55, s{sHC}, 224''')
    for m in range(4):
        p(f's_xor_b32 s52, s53, {4*m}\ns_mul_i32 s52, s52, 114688\ns_add_u32 s{82+m}, s52, s55')
def g1_dma_addr(q):
    p = Prog(); t = vTMP; d = vDMA + q
    p(f'''v_add_u32 v{t}, {64*q}, v0
    v_mul_u32_u24 v{t+1}, 4682, v{t}
    v_lshrrev_b32 v{t+1}, 16, v{t+1}
    v_mul_u32_u24 v{t+2}, 14, v{t+1}
    v_sub_u32 v{t}, v{t}, v{t+2}
    v_lshrrev_b32 v{t+2}, 1, v{t+1}
    v_xor_b32 v{t+2}, v{t+2}, v{t+1}
    v_and_b32 v{t+2}, 4, v{t+2}
    v_mul_u32_u24 v{t+2}, 3, v{t+2}
    v_xor_b32 v{t+1}, v{t+2}, v{t+1}
    v_mul_u32_u24 v{t+1}, 3584, v{t+1}
    v_lshl_add_u32 v{d}, v{t}, 4, v{t+1}''')
    if q & 3: p(f'v_subrev_u32 v{d}, {(q&3)*1024}, v{d}')
    return p
def g1_wl(m):
    L = []
    for q in range(7):
        g = Prog()
        if m == 0: g.add(g1_dma_addr(q))
        if q in (0, 4): g(f's_add_u32 m0, s{sLB}, {W1OFF[m%3] + (q>>2)*4096}')
        g(f'buffer_load_dwordx4 v{vDMA+q}, {W1}, s{82+m} offen offset:{(q&3)*1024} lds', f'dma{m}')
        L.append(g)
    return L
def g1_xl(u):
    L = []
    for q in range(4):
        g = Prog()
        if q == 0: g(f's_add_u32 m0, s{sLB}, {XSOFF[u%3]}\ns_xor_b32 s57, s59, {u*128}')
        g(f'buffer_load_dwordx4 v{vXO+q}, {X}, s57 offen offset:{q*1024} lds', f'xd{u}')
        L.append(g)
    return L
def g1_consts():
    p = Prog(); t = vTMP
    p(f'''v_lshrrev_b32 v{t}, 1, v2
    v_and_b32 v{t+1}, 1, v2
    v_lshlrev_b32 v{t}, 4, v{t}
    v_lshl_add_u32 v{t}, v{t+1}, 2, v{t}
    v_lshrrev_b32 v{t+1}, 2, v1
    v_add_u32 v{t}, v{t}, v{t+1}
    v_mul_u32_u24 v{t}, 224, v{t}
    v_and_b32 v{t+1}, 3, v1
    v_lshl_add_u32 v{t}, v{t+1}, 3, v{t}
    v_lshlrev_b32 v{t+2}, 4, v0
    v_cmp_eq_u32 s[76:77], 1, v{t+1}
    v_cmp_eq_u32 s[78:79], 2, v{t+1}
    v_cmp_eq_u32 s[80:81], 3, v{t+1}''')
    for i in range(4):
        p(f'''s_xor_b32 s52, s{sW}, {i}
        s_mul_i32 s53, s52, {WST}
        s_lshl_b32 s52, s52, 11
        s_add_u32 s52, s52, {L_F}
        v_add_u32 v{vT+i}, s53, v{t}
        v_add_u32 v{vF+i}, s52, v{t+2}
        v_mov_b32 v{vONE+i}, 0x3f803f80''')
    p(f'''v_lshrrev_b32 v{t+3}, 1, v1
    v_xor_b32 v{t+3}, v{t+3}, v2
    v_lshlrev_b32 v{t+3}, 4, v{t+3}
    v_lshl_add_u32 v{t+3}, v1, 7, v{t+3}
    v_add_u32 v{vXR}, s{sLB}, v{t+3}
    v_xor_b32 v{vXR+1}, 64, v{vXR}
    v_and_b32 v{vSG}, 1, v1
    v_lshlrev_b32 v{vSG}, 31, v{vSG}
    v_xor_b32 v{vSG}, -1.0, v{vSG}''')
    k2f, g8, ang, c, s = t, t+1, t+2, t+4, t+12
    p(f'''s_lshl_b32 s52, s{sHC}, 4
    s_add_u32 s52, s52, 1
    v_add_u32 v{k2f}, s52, v1
    v_cvt_f32_u32 v{k2f}, v{k2f}
    v_mul_f32 v{k2f}, {fx(1/512)}, v{k2f}
    v_lshlrev_b32 v{g8}, 3, v2''')
    for m in range(2):
        p(f'''s_xor_b32 s52, s{sXOR}, {m*256}
        s_lshr_b32 s52, s52, 1
        v_add_u32 v{ang}, s52, v{g8}
        v_cvt_f32_u32 v{ang}, v{ang}
        v_mul_f32 v{ang}, v{ang}, v{k2f}''')
        for j in range(8):
            p(f'v_cos_f32 v{c+j}, v{ang}\nv_sin_f32 v{s+j}, v{ang}')
            if j < 7: p(f'v_add_f32 v{ang}, v{ang}, v{k2f}')
        for j in range(4):
            p(f'{CVT} v{t+20+j}, v{c+2*j}, v{c+2*j+1}\n{CVT} v{t+24+j}, -v{s+2*j}, -v{s+2*j+1}')
        p(f'ds_write_b128 v{vF}, {V(t+20,4)} offset:{m*8192}\nds_write_b128 v{vF}, {V(t+24,4)} offset:{m*8192+1024}')
    return p
def d32_consts():
    p = Prog(); t = vTMP
    lf, ang, c, s = t, t+1, t+4, t+12
    p(f'''v_cvt_f32_u32 v{lf}, v1
    v_cvt_f32_u32 v{ang}, v2
    v_mul_f32 v{lf}, {fx(1/32)}, v{lf}
    v_mul_f32 v{ang}, 4.0, v{ang}
    v_mul_f32 v{ang}, v{ang}, v{lf}''')
    for j in range(8):
        p(f'v_cos_f32 v{c+j}, v{ang}\nv_sin_f32 v{s+j}, v{ang}')
        if j == 3: p(f'v_fmamk_f32 v{ang}, v{lf}, {fx(13.0)}, v{ang}')
        elif j < 7: p(f'v_add_f32 v{ang}, v{ang}, v{lf}')
    for j in range(4):
        p(f'''{CVT} v{vD32+j}, v{c+2*j}, v{c+2*j+1}
        {CVT} v{vD32+4+j}, v{s+2*j}, v{s+2*j+1}
        {CVT} v{vD32+8+j}, v{c+2*j}, -v{c+2*j+1}
        {CVT} v{vD32+12+j}, v{s+2*j}, -v{s+2*j+1}''')
    return p
def b1_loads():
    g = Prog()
    g(f's_mul_i32 s58, s{sHC}, 224\nv_lshlrev_b32 v54, 3, v0\nbuffer_load_dwordx2 {V(vB1,2)}, v54, {B1}, s58 offen')
    return [g]
def g1_reads(st):
    m, i = st >> 2, st & 3; fb = aFR + (st & 1)*36; u = st >> 1
    L = []
    if not st & 1:
        for ii in range(2):
            for tt in range(2):
                L.append(Prog()(f'ds_read_b128 {A(aX+((u&1)*4+ii*2+tt)*4,4)}, v{vXR+ii} offset:{XSOFF[u%3]+tt*2048}'))
    for n in range(7):
        for hh in range(2):
            L.append(Prog()(f'ds_read_b64_tr_b16 {A(fb+4*n+2*hh,2)}, v{vT+i} offset:{W1OFF[m%3] + hh*1792 + n*32}'))
    for t in range(2):
        L.append(Prog()(f'ds_read_b128 {A(fb+28+4*t,4)}, v{vF+i} offset:{(m&1)*8192 + t*1024}'))
    return L
def g1_mfmas(st):
    m, i = st >> 2, st & 3; fb = aFR + (st & 1)*36
    p = Prog()
    xf = lambda tt: A(aX + ((st&3)*2+tt)*4, 4)
    c = lambda r: r if st else '0'
    for tt in range(2):
        p(f'{M16} {A(aSUM+4*tt,4)}, {V(vONE,4)}, {xf(tt)}, {c(A(aSUM+4*tt,4))}')
        p(f'{M16} {A(aSQ+4*tt,4)}, {xf(tt)}, {xf(tt)}, {c(A(aSQ+4*tt,4))}')
    for n in range(7):
        for tt in range(2):
            d = V(vHID + (2*n+tt)*4, 4)
            p(f'{M16} {d}, {A(fb+4*n,4)}, {xf(tt)}, {c(d)}')
        if i == 0: p(f'{M16} {A(aCS+4*n,4)}, {V(vONE,4)}, {A(fb+4*n,4)}, {c(A(aCS+4*n,4))}')
    for t in range(2):
        for tt in range(2):
            d = V(vXF + (2*t+tt)*4, 4)
            p(f'{M16} {d}, {xf(tt)}, {A(fb+28+4*t,4)}, {c(d)}')
    return p
def g1_main(sched, hook=None, lstart=4, levery=4, fill=None, xds={}):
    p = Prog(); t = vTMP + 24
    p.wvm('xd0'); p.wvm('dma0'); p.wds()
    for g in g1_reads(0): p.add(g)
    for st in range(16):
        mf = g1_mfmas(st)
        pre = Prog(); pre.wds()
        if st < 15:
            rd = g1_reads(st+1)
            if (st & 3) == 3: pre.wvm(f'dma{(st+1)>>2}')
            if st & 1: pre.wvm(f'xd{(st+1)>>1}')
            if (st & 3) == 0 or st == 14:
                pre('s_barrier')
                if hook and st == 0: pre.add(hook)
            rd[0] = pre.add(rd[0])
            if len(rd) > 16: rd = [rd[0].add(rd[1]), rd[2].add(rd[3])] + rd[4:]
            mf, rest = weave(mf, rd, start=2, pred=ismfma); assert not rest.l
        ex = Prog()
        if st == 8:
            for k in range(16): ex(f'v_mul_f32 v{vXF+k}, v{vSG}, v{vXF+k}')
        if st == 13:
            ex(f's_lshl_b32 s52, s{sW}, 9\ns_add_u32 s52, s52, {L_CS}\nv_lshlrev_b32 v55, 2, v1\nv_add_u32 v55, s52, v55')
            for n in range(7): ex(f'ds_write_b32 v55, a{aCS+4*n} offset:{64*n}')
        if st == 14:
            ex(f'v_and_b32 v55, 31, v0\nv_lshlrev_b32 v55, 4, v55\nv_add_u32 v55, {L_CS}, v55')
            for k in range(4): ex(f'ds_read_b128 {V(vTMP+4*k,4)}, v55 offset:{512*k}')
            for k in range(2): ex(f'v_lshlrev_b32 v{vTMP+16+2*k}, 16, v{vB1+k}\nv_and_b32 v{vTMP+17+2*k}, 0xffff0000, v{vB1+k}')
        if st == 15:
            for k in range(4): ex(f'v_add_f32 v{vTMP+k}, v{vTMP+k}, v{vTMP+4+k}\nv_add_f32 v{vTMP+8+k}, v{vTMP+8+k}, v{vTMP+12+k}')
            for k in range(4): ex(f'v_add_f32 v{vTMP+k}, v{vTMP+k}, v{vTMP+8+k}')
            ex(f'v_lshlrev_b32 v54, 4, v0\nv_add_u32 v54, {L_CS+2560}, v54')
            ex(f'ds_write_b128 v55, {V(vTMP,4)} offset:2048\nds_write_b128 v54, {V(vTMP+16,4)}')
        for g in xds.get(st, []): ex.add(g)
        if fill is not None and not ex.l: mf, fill = weave(mf, fill, pred=ismfma)
        mf, rest = weave(mf, ex, start=3 if st < 15 else 0, pred=ismfma); mf.add(rest)
        ld = sched.get(st, []); ev = levery if len(ld) <= 4 else max(1, 18//len(ld))
        mf, rest = weave(mf, ld, start=lstart, every=ev, pred=ismfma); mf.add(rest)
        p.add(mf)
    assert fill is None or not fill.l, len(fill.l)
    return p
vRS, vNM = 12, 14
def g1_stats_z():
    p = Prog(); t = vTMP
    p(f'''v_lshrrev_b32 v{t}, 2, v1
    v_lshl_add_u32 v{t}, v{t}, 4, v1
    v_lshlrev_b32 v{t}, 2, v{t}
    v_lshlrev_b32 v{t+1}, 4, v2''')
    for tt in range(2):
        q = t+4+4*tt
        for r in range(4): p(f'v_accvgpr_read_b32 v{q+r}, a{aSQ+4*tt+r}')
        p(f'''v_cndmask_b32 v{q}, v{q}, v{q+1}, s[76:77]
        v_cndmask_b32 v{q}, v{q}, v{q+2}, s[78:79]
        v_cndmask_b32 v{q}, v{q}, v{q+3}, s[80:81]
        ds_bpermute_b32 v{q}, v{t}, v{q}
        v_accvgpr_read_b32 v{q+1}, a{aSUM+4*tt}
        v_mul_f32 v{q+1}, {fx(1/512)}, v{q+1}
        v_mul_f32 v{q+2}, v{q+1}, v{q+1}''')
    p(f'''s_cmp_eq_u32 s{sHC}, 15
    s_cselect_b32 s52, 15, 16
    v_cmp_eq_u32 vcc, s52, v1
    v_mov_b32 v{t+2}, {fx(2.0**-19)}
    v_mov_b32 v{t+3}, {fx(2.0**-20)}
    v_cndmask_b32 v{t+2}, v{t+2}, v{t+3}, vcc
    v_mul_f32 v{t+2}, v{t+2}, v{vSG}''')
    for tt in range(2):
        q = t+4+4*tt
        p(f'''v_mul_f32 v{q}, {fx(1/512)}, v{q}
        v_sub_f32 v{q}, v{q}, v{q+2}
        v_max_f32 v{q}, 0, v{q}
        v_add_f32 v{q+2}, {fx(1e-5)}, v{q}
        v_rsq_f32 v{q+2}, v{q+2}''')
        for r in range(4): p(f'ds_bpermute_b32 v{t+12+4*tt+r}, v{t+1}, v{q+2} offset:{4*r}')
    for tt in range(2):
        q = t+4+4*tt
        p(f'''v_mul_f32 v{q}, v{q}, v{q+2}
        v_fmaak_f32 v{q}, v{q}, v{q+2}, {fx(1e-5)}
        v_rsq_f32 v{q}, v{q}
        v_mul_f32 v{vRS+tt}, v{q}, v{q+2}
        v_mul_f32 v{vNM+tt}, v{vRS+tt}, -v{q+1}''')
    for k in range(0, 8, 2):
        p(f'v_pk_mul_f32 {V(t+12+k,2)}, {V(t+12+k,2)}, {V(t+2,2)} op_sel_hi:[1,0]')
    for tq in range(2):
        for k in range(0, 8, 2):
            p(f'v_pk_mul_f32 {V(vXF+8*tq+k,2)}, {V(vXF+8*tq+k,2)}, {V(t+12+k,2)}')
    br, bi, bn = t, t+4, t+8
    for k in range(4):
        p(f'''{CVT} v{br+k}, v{vXF+2*k}, v{vXF+2*k+1}
        {CVT} v{bi+k}, v{vXF+8+2*k}, v{vXF+8+2*k+1}
        {CVT} v{bn+k}, -v{vXF+2*k}, -v{vXF+2*k+1}''')
    z = vXF
    for ct in range(2):
        p(f'{M16} {V(z+8*ct,4)}, {V(vD32+8*ct,4)}, {V(br,4)}, 0\n{M16} {V(z+8*ct+4,4)}, {V(vD32+8*ct,4)}, {V(bi,4)}, 0')
    for ct in range(2):
        p(f'{M16} {V(z+8*ct,4)}, {V(vD32+8*ct+4,4)}, {V(bi,4)}, {V(z+8*ct,4)}\n{M16} {V(z+8*ct+4,4)}, {V(vD32+8*ct+4,4)}, {V(bn,4)}, {V(z+8*ct+4,4)}')
    p(f'''s_lshl2_add_u32 s52, s{sW}, {L_ZT}
    v_lshlrev_b32 v{t+12}, 10, v2
    v_lshl_add_u32 v{t+12}, v1, 4, v{t+12}
    v_add_u32 v{t+12}, s52, v{t+12}
    s_lshl_b32 s52, s{sW}, 11
    s_add_u32 s52, s52, {L_ZT}
    v_lshlrev_b32 v{t+13}, 4, v0
    v_add_u32 v{t+13}, s52, v{t+13}
    s_lshl2_add_u32 s52, s{sHC}, s{sW}
    s_lshl_b32 s52, s52, 7
    s_add_u32 s52, s52, s{sRB}
    s_lshl_b32 s52, s52, 8
    s_add_u32 s59, s52, {Z_OFF}
    s_add_u32 s58, s59, 16384
    v_lshlrev_b32 v{t+14}, 12, v2
    v_lshl_add_u32 v{t+14}, v1, 4, v{t+14}''')
    for ct in range(2):
        for r in range(4):
            p(f'{CVT} v{t+4*ct+r}, v{z+8*ct+r}, v{z+8*ct+4+r}\nds_write_b32 v{t+12}, v{t+4*ct+r} offset:{ct*4096+r*256}')
    p.wds(); p('s_barrier')
    q = Prog()
    q(f'ds_read_b128 {V(t,4)}, v{t+13}\nds_read_b128 {V(t+4,4)}, v{t+13} offset:1024')
    q(f'buffer_store_dwordx4 {V(t,4)}, v{t+14}, {WS}, s59 offen sc1\nbuffer_store_dwordx4 {V(t+4,4)}, v{t+14}, {WS}, s58 offen sc1', 'zst')
    return p, q
def g1_gelu():
    K0 = -2*math.log2(math.e)*math.sqrt(2/math.pi); K1 = K0*0.044715
    t = vTMP + 8
    pre = Prog()
    pre(f'''s_mov_b32 s74, {fx(K1)}
    v_mov_b32 v16, {fx(K0)}
    v_lshlrev_b32 v17, 4, v2
    v_add_u32 v17, {L_CS+2048}, v17
    v_lshlrev_b32 v18, 4, v0
    s_lshl2_add_u32 s52, s{sRB}, s{sW}
    s_mul_i32 s52, s52, 112
    s_mul_i32 s53, s{sHC}, 7
    s_add_u32 s52, s52, s53
    s_lshl_b32 s75, s52, 10
    s_add_u32 s57, s75, 4096
    ds_read_b128 {V(t,4)}, v17
    ds_read_b128 {V(t+8,4)}, v17 offset:512''')
    L = []
    for n in range(7):
        p = Prog(); cs = t + 4*(n & 1); bu = cs+8; u = t+16; e = t+20
        if n < 6: p(f'ds_read_b128 {V(t+4*((n+1)&1),4)}, v17 offset:{64*(n+1)}\nds_read_b128 {V(t+8+4*((n+1)&1),4)}, v17 offset:{512+64*(n+1)}')
        for tt in range(2):
            h = vHID + (2*n+tt)*4
            sel = 'op_sel:[0,1,0] op_sel_hi:[1,1,1]' if tt else 'op_sel_hi:[1,0,1]'
            for k in (0, 2): p(f'v_pk_fma_f32 {V(u+k,2)}, {V(cs+k,2)}, {V(vNM,2)}, {V(bu+k,2)} {sel}')
            for k in (0, 2): p(f'v_pk_fma_f32 {V(u+k,2)}, {V(h+k,2)}, {V(vRS,2)}, {V(u+k,2)} {sel}')
            for k in (0, 2): p(f'v_pk_mul_f32 {V(e+k,2)}, {V(u+k,2)}, {V(u+k,2)}')
            for k in (0, 2): p(f'v_pk_fma_f32 {V(e+k,2)}, {V(e+k,2)}, s[74:75], v[16:17] op_sel_hi:[1,0,0]')
            for k in (0, 2): p(f'v_pk_mul_f32 {V(e+k,2)}, {V(e+k,2)}, {V(u+k,2)}')
            for k in range(4): p(f'v_exp_f32 v{e+k}, v{e+k}')
            for k in (0, 2): p(f'v_pk_add_f32 {V(e+k,2)}, {V(e+k,2)}, 1.0 op_sel_hi:[1,0]')
            for k in range(4): p(f'v_rcp_f32 v{e+k}, v{e+k}')
            for k in (0, 2): p(f'v_pk_mul_f32 {V(u+k,2)}, {V(u+k,2)}, {V(e+k,2)}')
            hh = vHID + 8*n
            for k in range(2): p(f'{CVT} v{hh+2*tt+k}, v{u+2*k}, v{u+2*k+1}')
        hh = vHID + 8*n
        p(f'v_permlane16_swap_b32 v{hh}, v{hh+2}\nv_permlane16_swap_b32 v{hh+1}, v{hh+3}')
        p(f'buffer_store_dwordx4 {V(hh,4)}, v18, {WS}, s{75 if n < 4 else 57} offen offset:{(n&3)*1024} sc1', 'hst')
        L.append(p)
    return pre, L
```

```python
from k_common import *
vACC, vG, vRING, vHC = 56, 120, 184, 248
vW2O, vW2R, vHO = 49, 3, 10
SLOT = [0, 1, 2, 3, 4, 0, 5, 1, 6, 7, 2, 3, 4, 0]
sROT = 65
def grp_soff(p, gam, dst, mul16):
    p(f's_add_u32 s{dst}, s{sROT}, {gam*2048}\ns_cmp_ge_u32 s{dst}, 28672\ns_cselect_b32 s53, 28672, 0\ns_sub_u32 s{dst}, s{dst}, s53')
    if mul16: p(f's_lshl_b32 s{dst}, s{dst}, 4')
def w2_addr(t):
    p = Prog()
    p(f'''s_and_b32 s52, s{sBP}, 3
    s_lshl1_add_u32 s52, s52, s{sCB}
    s_cmp_ge_u32 s52, 7
    s_cselect_b32 s53, 7, 0
    s_sub_u32 s52, s52, s53
    s_lshl_b32 s{sROT}, s52, 12
    s_mul_i32 s52, s{sW}, {448*1024}
    s_lshl_b32 s53, s{sCB}, 7
    s_add_u32 s52, s52, s53
    v_lshrrev_b32 v{t}, 3, v0
    v_and_b32 v{t+1}, 7, v0
    v_and_b32 v{t+2}, 1, v2
    v_lshlrev_b32 v{t+2}, 2, v{t+2}
    v_xor_b32 v{t+1}, v{t+1}, v{t+2}
    v_lshlrev_b32 v{t}, 10, v{t}
    v_lshl_add_u32 v{t}, v{t+1}, 4, v{t}
    v_add_u32 v{vW2O}, s52, v{t}''')
    for q in range(1, 4): p(f'v_add_u32 v{vW2O+q}, {q*7168}, v{vW2O}')
    p(f'''v_lshrrev_b32 v{t}, 2, v1
    v_lshrrev_b32 v{t+1}, 1, v2
    v_lshl_add_u32 v{t+1}, v{t+1}, 3, v{t}
    v_lshlrev_b32 v{t+1}, 7, v{t+1}
    v_lshrrev_b32 v{t}, 1, v{t}
    s_and_b32 s52, s{sW}, 1
    v_xor_b32 v{t}, s52, v{t}
    v_lshl_add_u32 v{t+1}, v{t}, 6, v{t+1}
    v_and_b32 v{t}, 1, v1
    v_lshl_add_u32 v{t+1}, v{t}, 5, v{t+1}
    v_lshl_add_u32 v{t+1}, v{t+2}, 2, v{t+1}
    v_and_b32 v{t}, 2, v1
    v_lshl_add_u32 v{t+1}, v{t}, 2, v{t+1}
    v_add_u32 v{vW2R}, s{sLB}, v{t+1}
    v_xor_b32 v{vW2R+1}, 64, v{vW2R}''')
    return p
def h_addr(t):
    p = Prog()
    p(f'''s_lshr_b32 s52, s{sW}, 1
    s_lshl1_add_u32 s52, s{sBP}, s52
    s_xor_b32 s53, s52, 1
    s_mul_i32 s54, s{sW}, 28672
    s_mul_i32 s52, s52, 114688
    s_mul_i32 s53, s53, 114688
    s_add_u32 s52, s52, s54
    s_add_u32 s53, s53, s54
    v_lshlrev_b32 v{t}, 4, v0
    v_add_u32 v{vHO}, s52, v{t}
    v_add_u32 v{vHO+1}, s53, v{t}''')
    return p
def w2_dma(gam):
    L = []
    for q in range(4):
        g = Prog()
        if q == 0:
            grp_soff(g, gam, 67, True)
            g(f's_add_u32 m0, s{sLB}, {SLOT[gam]*4096}')
        g(f'buffer_load_dwordx4 v{vW2O+q}, {W2}, s67 offen offset:{q*1024} lds', f'w2d{gam}')
        L.append(g)
    return L
def w2_reads(gam):
    L = []
    for u in range(2):
        for ds in range(2):
            for hh in range(2):
                g = Prog()
                if not L: g.wvm(f'w2d{gam}')
                g(f'ds_read_b64_tr_b16 {A(((2*gam+u)*2+ds)*4+2*hh,2)}, v{vW2R+ds} offset:{SLOT[gam]*4096+u*2048+hh*512}')
                L.append(g)
    return L
NR = 16
def h_loads():
    L = []
    for k in range(56):
        gam, u, bs = k >> 2, (k >> 1) & 1, k & 1
        g = Prog()
        if k % 4 == 0: grp_soff(g, gam, 68, False)
        g(f'buffer_load_dwordx4 {V(vRING+4*(k%NR),4)}, v{vHO+bs}, {WS}, s68 offen offset:{u*1024} sc1')
        L.append(g)
    return L
def g2_mfmas():
    p = Prog()
    for k in range(56):
        t, bs = k >> 1, k & 1
        for ds in range(2):
            d = V(vACC + (2*bs+ds)*16, 16)
            p(f'{M32} {d}, {A((t*2+ds)*4,4)}, {V(vRING+4*(k%NR),4)}, {d if t else 0}')
    return p
def g_consts(t):
    p = Prog()
    df, kf, ang, c, s = t, t+1, t+2, t+4, t+8
    p(f'''s_lshl_b32 s54, s{sW}, 6
    s_add_u32 s54, s54, 1
    v_lshlrev_b32 v{kf}, 2, v2
    v_add_u32 v{kf}, s54, v{kf}
    v_cvt_f32_u32 v{kf}, v{kf}
    s_lshl_b32 s54, s{sCB}, 6
    v_add_u32 v{df}, s54, v1
    v_cvt_f32_u32 v{df}, v{df}
    v_mul_f32 v{df}, {fx(1/512)}, v{df}''')
    for dq in range(4):
        p(f'v_mul_f32 v{ang}, v{df}, v{kf}')
        for hq in range(4):
            for i in range(4):
                p(f'v_cos_f32 v{c+i}, v{ang}\nv_sin_f32 v{s+i}, v{ang}')
                if i < 3: p(f'v_add_f32 v{ang}, v{ang}, v{df}')
                elif hq < 3: p(f'v_fmamk_f32 v{ang}, v{df}, {fx(13.0)}, v{ang}')
                elif dq < 3: p(f'v_add_f32 v{df}, {fx(1/32)}, v{df}')
            o = vG + (hq*4+dq)*4
            p(f'{CVT} v{o}, v{c}, v{c+1}\n{CVT} v{o+1}, v{c+2}, v{c+3}\n{CVT} v{o+2}, -v{s}, -v{s+1}\n{CVT} v{o+3}, -v{s+2}, -v{s+3}')
    return p
def h_consts(t):
    p = Prog()
    af, ang, c, s = t, t+1, t+2, t+3
    p(f'''v_and_b32 v{af}, 31, v0
    v_cvt_f32_u32 v{af}, v{af}
    v_lshrrev_b32 v{ang}, 5, v0
    v_cvt_f32_u32 v{ang}, v{ang}
    v_mul_f32 v{af}, {fx(1/32)}, v{af}
    v_add_f32 v{ang}, v{ang}, v{ang}
    v_mul_f32 v{ang}, v{ang}, v{af}''')
    for kk in range(2):
        for tq in range(4):
            pp = 8*(tq >> 1) + 4*kk + (tq & 1)
            if pp: p(f'v_fmamk_f32 v{c}, v{af}, {fx(float(pp))}, v{ang}\nv_sin_f32 v{s}, v{c}\nv_cos_f32 v{c}, v{c}')
            else:
                p(f'''v_sin_f32 v{s}, v{ang}
                v_and_b32 v{c}, 1, v0
                v_lshlrev_b32 v{c}, 31, v{c}
                v_xor_b32 v{c}, -1.0, v{c}
                v_cmp_gt_u32 s[76:77], 32, v0
                v_cndmask_b32 v{s}, v{s}, v{c}, s[76:77]
                v_cos_f32 v{c}, v{ang}''')
            p(f'{CVT} v{vHC+4*kk+tq}, v{c}, -v{s}')
    return p
def y_loads():
    L = []
    g = Prog()
    g(f'''s_lshl_b32 s52, s{sBP}, 16
    s_lshl_b32 s53, s{sW}, 13
    s_add_u32 s52, s52, s53
    s_add_u32 s69, s52, {Y_OFF}
    v_sub_u32 v12, 0, v2
    v_and_b32 v12, 3, v12
    v_xor_b32 v12, v12, v0
    v_lshlrev_b32 v12, 4, v12''')
    for b in range(2):
        for h2 in range(2):
            g(f's_add_u32 m0, s{sLB}, {16384 + (b*2+h2)*4096}\ns_add_u32 s70, s69, {b*32768 + h2*4096}')
            for q in range(4):
                g(f'buffer_load_dwordx4 v12, {WS}, s70 offen offset:{q*1024} sc1 lds', f'yd{b}{h2}')
                L.append(g); g = Prog()
    return L
def y_reads():
    L = []
    g = Prog()
    g(f'''v_lshrrev_b32 v12, 2, v1
    v_sub_u32 v12, 0, v12
    v_xor_b32 v12, v12, v2
    v_and_b32 v12, 3, v12
    v_lshlrev_b32 v12, 4, v12
    v_lshl_add_u32 v12, v1, 6, v12
    v_add_u32 v12, s{sLB}, v12''')
    for b in range(2):
        for hq in range(4):
            for rt in range(2):
                if (hq & 1) == 0 and rt == 0: g.wvm(f'yd{b}{hq>>1}')
                g(f'ds_read_b128 {A(((b*4+hq)*2+rt)*4,4)}, v12 offset:{16384 + ((b*4+hq)*2+rt)*1024}')
                L.append(g); g = Prog()
    return L
vXX, vBB = 20, 28
def fin_loads():
    g = Prog()
    g(f'''s_lshr_b32 s52, s{sW}, 1
    s_lshl1_add_u32 s52, s{sBP}, s52
    s_lshl_b32 s52, s52, 10
    s_and_b32 s53, s{sW}, 1
    s_lshl1_add_u32 s53, s{sCB}, s53
    s_lshl_b32 s72, s53, 6
    s_add_u32 s71, s52, s72
    v_and_b32 v13, 32, v0
    v_and_b32 v14, 31, v0
    v_lshl_add_u32 v14, v14, 16, v13''')
    L = []
    for k in range(2):
        g(f'buffer_load_dwordx4 {V(vXX+4*k,4)}, v14, {X}, s71 offen offset:{16*k}'); L.append(g); g = Prog()
        g(f'buffer_load_dwordx4 {V(vBB+4*k,4)}, v13, {B2}, s72 offen offset:{16*k}'); L.append(g); g = Prog()
    return L
def r_mfmas():
    p = Prog()
    for b in range(2):
        for hq in range(4):
            for rt in range(2):
                for dq in range(4):
                    d = V(vRING + ((b*4+dq)*2+rt)*4, 4)
                    p(f'{M16} {d}, {A(((b*4+hq)*2+rt)*4,4)}, {V(vG+(hq*4+dq)*4,4)}, {d if hq else 0}')
    return p
def g_part_writes():
    L = []
    g = Prog(); g(f'v_lshlrev_b32 v15, 4, v0\nv_add_u32 v15, s{sLB}, v15')
    for sl in range(1, 4):
        for k in range(4):
            g(f'ds_write_b128 v15, {V(vACC+16*sl+4*k,4)} offset:{(sl-1)*4096+k*1024}'); L.append(g); g = Prog()
    return L
def fin_addr(t):
    p = Prog()
    p(f'''v_and_b32 v{t}, 3, v0
    v_bfe_u32 v{t+1}, v0, 3, 2
    v_lshl_add_u32 v{t}, v{t+1}, 2, v{t}
    v_lshlrev_b32 v{t}, 4, v{t}
    v_bfe_u32 v{t+1}, v0, 2, 1
    v_lshl_add_u32 v{t}, v{t+1}, 10, v{t}
    v_lshrrev_b32 v{t+1}, 5, v0
    v_lshl_add_u32 v{t}, v{t+1}, 8, v{t}
    s_lshl_b32 s54, s{sW}, 11
    s_add_u32 s54, s54, 12288
    v_add_u32 v16, s54, v{t}
    v_add_u32 v3, {2*WST}, v16
    v_lshlrev_b32 v{t}, 4, v0''')
    for sl in range(1, 4):
        p(f's_xor_b32 s54, s{sW}, {sl}\ns_mul_i32 s54, s54, {WST}\ns_add_u32 s54, s54, {(sl-1)*4096}\nv_add_u32 v{16+sl}, s54, v{t}')
    return p
def finish():
    p = Prog()
    for k in range(8):
        r = vRING + 8*k
        for j in range(4): p(f'{CVT} v{r+j}, v{r+2*j}, v{r+2*j+1}')
        p(f'ds_write_b128 v15, {V(r,4)} offset:{12288+1024*k}')
    p.wds(); p('s_barrier')
    for ws in range(4):
        for kk in range(2):
            p(f'ds_read_b128 {A((ws*2+kk)*4,4)}, v{3 if ws >= 2 else 16} offset:{(ws&1)*WST+kk*512}')
    for k in range(4):
        for sl in range(1, 4):
            p(f'ds_read_b128 {V(vACC+16*sl+4*k,4)}, v{16+sl} offset:{k*1024}')
    S = vG
    q = Prog()
    for k in range(8): q(f'{M32} {V(S,16)}, {A(4*k,4)}, {V(vHC+4*(k&1),4)}, {V(S,16) if k else 0}')
    f = Prog(); bu = vG+16; e = vG+32
    for k in range(8): f(f'v_lshlrev_b32 v{bu+2*k}, 16, v{vBB+k}\nv_and_b32 v{bu+2*k+1}, 0xffff0000, v{vBB+k}')
    for k in range(0, 16, 2): f(f'v_pk_add_f32 {V(bu+k,2)}, {V(bu+k,2)}, {V(vACC+k,2)}')
    q, rest = weave(q, f, per=3, pred=ismfma); p.add(q).add(rest)
    p(f's_mov_b32 s74, {fx(-math.log2(math.e))}')
    for k4 in range(0, 16, 4):
        for k in (k4, k4+2): p(f'v_pk_add_f32 {V(vACC+16+k,2)}, {V(vACC+16+k,2)}, {V(vACC+32+k,2)}\nv_pk_add_f32 {V(bu+k,2)}, {V(bu+k,2)}, {V(vACC+48+k,2)}')
        for k in (k4, k4+2): p(f'v_pk_add_f32 {V(bu+k,2)}, {V(bu+k,2)}, {V(vACC+16+k,2)}')
        for k in (k4, k4+2): p(f'v_pk_mul_f32 {V(e+k,2)}, {V(bu+k,2)}, s[74:75] op_sel_hi:[1,0]')
        for k in range(k4, k4+4): p(f'v_exp_f32 v{e+k}, v{e+k}')
        for k in (k4, k4+2): p(f'v_pk_add_f32 {V(e+k,2)}, {V(e+k,2)}, 1.0 op_sel_hi:[1,0]')
        for k in range(k4, k4+4): p(f'v_rcp_f32 v{e+k}, v{e+k}')
        for k in (k4, k4+2): p(f'v_lshlrev_b32 v{vACC+k}, 16, v{vXX+k//2}\nv_and_b32 v{vACC+k+1}, 0xffff0000, v{vXX+k//2}')
        for k in (k4, k4+2): p(f'v_pk_mul_f32 {V(e+k,2)}, {V(e+k,2)}, {V(bu+k,2)}')
        for k in (k4, k4+2): p(f'v_pk_fma_f32 {V(e+k,2)}, {V(e+k,2)}, {V(S+k,2)}, {V(vACC+k,2)}')
        for k in (k4, k4+2): p(f'{CVT} v{vXX+k//2}, v{e+k}, v{e+k+1}')
        if k4 & 4: p(f'buffer_store_dwordx4 {V(vXX+(k4>>3)*4,4)}, v14, {OUT}, s71 offen offset:{(k4>>3)*16}')
    return p
```

```python
import re
REG = re.compile(r'(?<![\w.])([vas])(?:(\d+)|\[(\d+):(\d+)\])(?![\w])')
TRANS = ('v_exp_f32','v_log_f32','v_rcp_f32','v_rsq_f32','v_sqrt_f32','v_sin_f32','v_cos_f32')
def regs(s):
    out = set()
    for m in REG.finditer(s):
        k = m.group(1)
        if m.group(2) is not None: out.add((k, int(m.group(2))))
        else:
            for i in range(int(m.group(3)), int(m.group(4))+1): out.add((k, i))
    if re.search(r'\bvcc\b', s): out.add(('s', 'vcc'))
    if re.search(r'\bm0\b', s): out.add(('s', 'm0'))
    if re.search(r'\bexec\b', s): out.add(('s', 'exec'))
    return out
def split_ops(rest):
    ops, depth, cur = [], 0, ''
    for ch in rest:
        if ch == '[': depth += 1
        if ch == ']': depth -= 1
        if ch == ',' and depth == 0: ops.append(cur.strip()); cur = ''
        else: cur += ch
    if cur.strip(): ops.append(cur.strip())
    return ops
class Ins:
    def __init__(self, text, tag=None):
        self.text = text.strip(); self.tag = tag
        t = self.text
        self.kind = None; self.w = set(); self.r = set(); self.passes = 0
        self.A = self.B = self.C = set()
        if t.startswith('@'):
            self.kind = 'pseudo'; return
        if t.endswith(':'):
            self.kind = 'label'; return
        p = t.split(None, 1); op = p[0]; self.op = op
        ops = split_ops(p[1]) if len(p) > 1 else []
        R = [regs(o) for o in ops]
        U = lambda l: set().union(*l) if l else set()
        if op.startswith('v_mfma'):
            self.kind = 'mfma'; self.passes = 8 if '32x32' in op else 4
            self.w = R[0]; self.A, self.B, self.C = R[1], R[2], R[3]; self.r = U(R[1:])
        elif op.startswith('v_'):
            self.kind = 'valu'
            base = re.sub(r'_e(32|64)$', '', op)
            self.trans = base in TRANS
            if 'swap' in op: self.w = U(R); self.r = U(R)
            elif op.startswith('v_nop'): pass
            else:
                self.w = R[0]; self.r = U(R[1:])
                if base.startswith(('v_fmac', 'v_mac', 'v_dot2c', 'v_pk_fmac')): self.r |= R[0]
                if base.startswith('v_cndmask') and len(ops) == 3: self.r.add(('s', 'vcc'))
                if base.startswith(('v_add_co', 'v_sub_co')): self.w |= R[1]
                if base.startswith('v_addc_co'): self.w |= R[1]
        elif op.startswith(('buffer_load', 'global_load')):
            self.kind = 'vmem'
            if re.search(r'\blds\b', t): self.r = U(R) | {('s', 'm0')}; self.dma = True
            else:
                self.w = R[0]; self.r = U(R[1:])
                if 'd16' in op: self.r |= R[0]
        elif op.startswith(('buffer_store', 'global_store', 'buffer_atomic')):
            self.kind = 'vmem'; self.r = U(R); self.store = True
            self.wide = R[0] if ('x4' in op or 'x3' in op) and op.startswith('buffer') else set()
        elif op.startswith('ds_'):
            self.kind = 'ds'
            if op.startswith(('ds_read', 'ds_bpermute', 'ds_permute', 'ds_swizzle')): self.w = R[0]; self.r = U(R[1:])
            else: self.r = U(R)
        elif op.startswith(('s_load', 's_memrealtime', 's_memtime')):
            self.kind = 'smem'; self.w = R[0]; self.r = U(R[1:])
        elif op.startswith('s_'):
            self.kind = 'salu'
            if op.startswith(('s_cmp', 's_cbranch', 's_branch', 's_waitcnt', 's_nop', 's_barrier', 's_setprio', 's_sleep', 's_endpgm')): self.r = U(R)
            else:
                self.w = R[0]; self.r = U(R[1:])
                if 'saveexec' in op: self.w |= {('s', 'exec')}
        else: raise ValueError(t)
    def states(self):
        if self.kind in ('label', 'pseudo'): return 0
        if self.kind == 'salu' and self.op == 's_nop': return int(self.text.split()[1]) + 1
        return 1
def need(p, c):
    n = 0
    vw = {x for x in p.w if x[0] != 's'}; sw = {x for x in p.w if x[0] == 's'}
    if p.kind == 'valu':
        if c.kind == 'mfma' and vw & c.r: n = max(n, 2)
        if p.trans and c.kind in ('valu', 'ds', 'vmem') and vw & c.r: n = max(n, 1)
        if c.kind == 'valu':
            if ('permlane' in c.op or 'dpp' in c.text or 'row_' in c.text or 'quad_perm' in c.text) and vw & c.r: n = max(n, 2)
            if c.op.startswith(('v_readlane', 'v_readfirstlane')) and vw & c.r: n = max(n, 1)
            if sw & c.r: n = max(n, 4 if c.op.startswith(('v_readlane', 'v_writelane')) else 2)
            if ('op_sel' in p.text and not p.op.startswith('v_pk') or 'sdwa' in p.text) and vw & (c.r | c.w): n = max(n, 1)
        if c.kind == 'vmem' and sw & c.r: n = max(n, 5)
    if p.kind == 'mfma':
        big = 12 if p.passes == 8 else 8
        if c.kind == 'mfma':
            if vw & (c.A | c.B): n = max(n, big)
            if vw & c.C and not (c.C == vw and c.passes == p.passes): n = max(n, big - 2)
            if vw & c.w and not (c.C == vw and c.passes == p.passes): n = max(n, big - 2)
        elif c.kind in ('valu', 'vmem', 'ds'):
            if vw & (c.r | c.w): n = max(n, big)
            if c.kind == 'valu' and p.C & c.w: n = max(n, 7 if p.passes == 8 else 3)
    if p.kind == 'salu' and ('s', 'm0') in sw and c.kind == 'vmem' and getattr(c, 'dma', False): n = max(n, 1)
    if p.kind == 'vmem' and getattr(p, 'wide', None) and p.wide & c.w: n = max(n, 2 if c.kind in ('valu', 'mfma') else 1)
    return n
class Prog:
    def __init__(self): self.l = []
    def __call__(self, s, tag=None):
        for x in s.strip().split('\n'):
            x = x.split(';')[0].strip()
            if x: self.l.append(Ins(x, tag))
        return self
    def add(self, other): self.l += other.l if isinstance(other, Prog) else other; return self
    def wvm(self, tag): self.l.append(Ins('@wvm ' + tag))
    def wds(self): self.l.append(Ins('@wds'))
    def wdsn(self, tag): self.l.append(Ins('@wdsn ' + tag))
    def synced(self): self.l.append(Ins('@synced'))
def weave(main, fill, start=0, every=1, per=1, pred=None):
    m = main.l if isinstance(main, Prog) else main
    f = [[x] for x in fill.l] if isinstance(fill, Prog) else [g.l if isinstance(g, Prog) else g for g in fill]
    out, k, cnt = [], 0, 0
    for x in m:
        out.append(x)
        if x.kind in ('pseudo', 'label'): continue
        if pred is None or pred(x):
            cnt += 1
            if cnt > start and (cnt - start) % every == 0:
                for _ in range(per):
                    if k < len(f): out += f[k]; k += 1
    rest = [y for g in f[k:] for y in g]
    p = Prog(); p.l = out
    q = Prog(); q.l = rest
    return p, q
def finalize(prog, stats=None):
    waited = set(); written = {('v', 0), ('s', 0), ('s', 1), ('s', 2), ('s', 'exec'), ('s', 'vcc')}
    for x in prog.l:
        if x.kind == 'pseudo' and x.text.startswith('@wvm'): waited.add(x.text.split()[1])
        if x.kind == 'vmem' and x.tag in waited: raise ValueError('tag issued after wait: ' + x.tag)
        u = x.r - written
        if u and not x.text.startswith('v_pk_') : print('UNINIT', x.text, u)
        elif len(u) > 1: print('UNINIT', x.text, u)
        written |= x.w
    out = []
    vm_n = 0; vm_done = 0; ds_n = 0; ds_done = 0
    pend_vm = {}; pend_ds = {}; tags = {}; dtags = {}; smem_pend = set()
    def emit_wait(v, d):
        nonlocal vm_done, ds_done, smem_pend
        parts = []
        if v is not None and v > vm_done:
            n = vm_n - v
            if n > 63: n = 63; v = vm_n - 63
            if v > vm_done: parts.append(f'vmcnt({n})'); vm_done = v
        if d is not None and (d > ds_done or d < 0):
            n = ds_n - d if d >= 0 else 0
            if smem_pend: n = 0
            if n > 14: n = 14
            parts.append(f'lgkmcnt({n})'); ds_done = max(ds_done, ds_n - n)
            if n == 0: smem_pend = set()
        if parts: out.append(Ins('s_waitcnt ' + ' '.join(parts)))
    for x in prog.l:
        if x.kind == 'pseudo':
            a = x.text.split()
            if a[0] == '@wvm': emit_wait(tags[a[1]], None)
            elif a[0] == '@wds': emit_wait(None, ds_n if not smem_pend else -1)
            elif a[0] == '@synced': vm_done = vm_n
            elif a[0] == '@wdsn': emit_wait(None, dtags[a[1]])
            continue
        if x.kind == 'label': out.append(x); continue
        touch = x.r | x.w
        v = max([pend_vm[r] for r in touch if r in pend_vm], default=None)
        d = max([pend_ds[r] for r in touch if r in pend_ds], default=None)
        if touch & smem_pend: d = -1
        emit_wait(v, d)
        if x.kind == 'vmem':
            if vm_n - vm_done >= 63: emit_wait(vm_n - 62, None)
            vm_n += 1
            for r in x.w: pend_vm[r] = vm_n
            if x.tag: tags[x.tag] = vm_n
        elif x.kind == 'ds':
            ds_n += 1
            for r in x.w: pend_ds[r] = ds_n
            if x.tag: dtags[x.tag] = ds_n
        elif x.kind == 'smem':
            smem_pend |= x.w
        elif x.kind == 'salu' and x.op == 's_waitcnt':
            m = re.search(r'vmcnt\((\d+)\)', x.text)
            if m: vm_done = max(vm_done, vm_n - int(m.group(1)))
            m = re.search(r'lgkmcnt\((\d+)\)', x.text)
            if m and int(m.group(1)) == 0: ds_done = ds_n; smem_pend = set()
        out.append(x)
    res = []
    for x in out:
        if x.kind not in ('label',):
            dist = 0; pad = 0
            for p in reversed(res):
                if dist >= 13: break
                if p.kind == 'label': continue
                pad = max(pad, need(p, x) - dist)
                dist += p.states()
            if pad > 0:
                res.append(Ins(f's_nop {pad-1}'))
                if stats is not None: stats['nops'] = stats.get('nops', 0) + pad
        res.append(x)
    if stats is not None: stats['n'] = len(res)
    return '\n'.join(('' if x.kind == 'label' else '    ') + x.text for x in res) + '\n'
```

```python
from k_common import *
import k_g1 as G1, k_p2 as P2, k_g2 as G2
NAME = 'recurrent_scan__spectral_gfnet__mixer_channel_mlp__prompt_kernel'
ZF, HF, YF = FL_OFF, FL_OFF + 4096, FL_OFF + 8192
vOOB, vPA, vP, vONEI = 5, 6, 7, 8
tail = []
def poll_issue(srd, va, so): return Prog()(f'buffer_load_dword v{vP}, v{va}, {srd}, {so} offen sc1')
def poll_check(name, srd, va, so):
    p = Prog()
    p(f'v_cmp_ne_u32 vcc, 1, v{vP}\ns_cbranch_vccnz SPIN_{name}\nBACK_{name}:')
    tail.append(f'''SPIN_{name}:
    s_mov_b32 s3, 0
LOOP_{name}:
    buffer_load_dword v{vP}, v{va}, {srd}, {so} offen sc1
    s_add_u32 s3, s3, 1
    s_cmp_gt_u32 s3, 20000
    s_cbranch_scc1 BACK_{name}
    s_waitcnt vmcnt(0)
    v_cmp_ne_u32 vcc, 1, v{vP}
    s_cbranch_vccnz LOOP_{name}
    s_branch BACK_{name}
''')
    return p
def flag_store(tag, scalc):
    p = Prog(); p(scalc); p.wvm(tag)
    p(f'buffer_store_dword v{vONEI}, v{vOOB}, {WS}, s56 offen sc1')
    return p
def w2rd(gam):
    L = G2.w2_reads(gam)
    for g in L: g.l[-1].tag = f'w2r{gam}'
    return L
def w2ld(gam):
    L = G2.w2_dma(gam)
    prev = [k for k in range(gam) if G2.SLOT[k] == G2.SLOT[gam]]
    if prev:
        g = Prog(); g.wdsn(f'w2r{prev[-1]}'); L[0] = g.add(L[0])
    return L
def flat(L):
    p = Prog()
    for g in L: p.add(g)
    return p
isvalu = lambda x: x.kind == 'valu'
def kernel(diag, cfg):
    p = Prog(); prologue(p, 'EXIT', diag)
    p(f'''s_cmp_lg_u32 s2, 0
    s_cbranch_scc1 NOZERO
    v_mov_b32 v224, 0
    v_mov_b32 v225, 0
    v_mov_b32 v226, 0
    v_mov_b32 v227, 0
    s_mul_i32 s52, s{sW}, 3072
    s_add_u32 s52, s52, {FL_OFF}
    v_lshlrev_b32 v228, 4, v0''')
    for k in range(3): p(f'buffer_store_dwordx4 v[224:227], v228, {WS}, s52 offen offset:{1024*k} sc1')
    p('NOZERO:\ns_waitcnt lgkmcnt(0)')
    G1.g1_addr(p)
    xl, wl = G1.g1_xl, G1.g1_wl
    for g in xl(0) + wl(0): p.add(g)
    p.add(G1.g1_consts())
    for g in xl(1): p.add(g)
    p.add(G1.d32_consts()).add(G2.w2_addr(224)).add(P2.p2_ids())
    p(f's_or_b32 s52, s2, s{sW}\nv_add_u32 v53, s52, v0\nv_lshlrev_b32 v53, 8, v53\nv_mov_b32 v55, 1')
    for g in wl(1) + xl(2): p.add(g)
    stamp(p, 1, diag)
    hook = Prog()(f'buffer_store_dword v55, v53, {DBG}, 0 offen sc1')
    w2, w3 = wl(2), wl(3)
    go = Prog()(f'v_mov_b32 v{vPA}, 0\nv_mov_b32 v{vONEI}, 1\nv_min_u32 v{vOOB}, 1, v0\nv_lshlrev_b32 v{vOOB}, 28, v{vOOB}').add(poll_issue(DBG, vPA, 0))
    sched = {0: xl(3), 1: w2[:4], 2: w2[4:], 3: xl(4), 4: xl(5), 5: w3[:4], 6: w3[4:] + G1.b1_loads(), 7: xl(6), 8: xl(7),
             9: w2ld(0), 10: w2ld(1), 11: [go], 12: w2ld(2) + w2ld(3), 13: w2ld(4) + w2ld(5)[:2], 14: w2ld(5)[2:] + w2ld(6), 15: w2ld(7)}
    xds = {12: w2rd(0), 14: w2rd(1)}
    fill = P2.p2_fwd_consts().add(P2.p2_inv_consts())
    p.add(G1.g1_main(sched, hook=hook, fill=fill, xds=xds))
    stamp(p, 2, diag)
    a, b = G1.g1_stats_z()
    p.add(a).add(b)
    p.add(poll_check('go', DBG, vPA, 0))
    stamp(p, 3, diag)
    pre, Lg = G1.g1_gelu(); p.add(pre)
    zfl = flag_store('zst', f's_lshl2_add_u32 s56, s{sHC}, s{sW}\ns_lshl4_add_u32 s56, s56, s{sRB}\ns_lshl2_add_u32 s56, s56, {ZF}')
    zpi = Prog()(f's_lshr_b32 s60, s62, 3\ns_lshl2_add_u32 s60, s{sHC2}, s60\ns_lshl_b32 s60, s60, 6\ns_add_u32 s60, s60, {ZF}\nv_lshlrev_b32 v{vPA}, 2, v1').add(poll_issue(WS, vPA, 's60'))
    wl2 = P2.p2_wloads()
    fills = {0: w2rd(2) + w2rd(3) + w2ld(8), 1: w2rd(4) + w2rd(5) + w2ld(9), 2: [zfl] + w2rd(6) + w2ld(10) + wl2[:4], 3: w2rd(7) + w2ld(11) + wl2[4:],
             4: w2ld(12), 5: w2ld(13), 6: [zpi]}
    for n, g in enumerate(Lg):
        f = fills.get(n, [])
        g, rest = weave(g, f, start=0, every=max(1, 48//max(1, len(f))), pred=isvalu); p.add(g).add(rest)
    stamp(p, 4, diag)
    for k in range(8, 14): p.add(flat(w2rd(k)))
    p.add(G2.h_addr(40))
    p.add(poll_check('z', WS, vPA, 's60'))
    p.add(P2.p2_zloads())
    p.add(flag_store('hst', f's_lshl2_add_u32 s56, s{sRB}, s{sW}\ns_lshl4_add_u32 s56, s56, s{sHC}\ns_lshl2_add_u32 s56, s56, {HF}'))
    p.add(P2.p2_fwd())
    p(f's_lshl_b32 s60, s{sBP}, 7\ns_lshl4_add_u32 s60, s{sW}, s60\ns_add_u32 s60, s60, {HF}\nv_and_b32 v{vPA}, 0x13, v0\nv_lshlrev_b32 v{vPA}, 2, v{vPA}')
    p.add(poll_issue(WS, vPA, 's60'))
    p.add(P2.p2_inv('CP0'))
    stamp(p, 5, diag)
    p.add(poll_check('h', WS, vPA, 's60'))
    hl = G2.h_loads()
    for g in hl[:12]: p.add(g)
    yfl = flag_store('yst', f's_lshl4_add_u32 s56, s{sW}, s{sHC2}\ns_lshl4_add_u32 s56, s56, s{sCP}\ns_lshl2_add_u32 s56, s56, {YF}')
    p.add(yfl)
    ypi = Prog()(f's_lshr_b32 s60, s{sBP}, 3\ns_lshl2_add_u32 s60, s60, s{sW}\ns_lshl_b32 s60, s60, 8\ns_add_u32 s60, s60, {YF}\nv_lshlrev_b32 v{vPA}, 2, v0').add(poll_issue(WS, vPA, 's60'))
    yl = G2.y_loads(); yl[0] = poll_check('y', WS, vPA, 's60').add(yl[0])
    hl[44] = hl[44].add(ypi)
    c = G2.g_consts(36).add(G2.h_consts(36)).add(G2.fin_addr(36))
    c0 = Prog(); c0.l = c.l[:60]; c.l = c.l[60:]; p.add(c0)
    m, rest = weave(G2.g2_mfmas(), hl[12:] + [a.add(b) for a, b in zip(yl[0::2], yl[1::2])] + G2.fin_loads(), every=2, pred=ismfma)
    m, rest2 = weave(m, c, per=3, pred=ismfma)
    p.add(m).add(rest).add(rest2)
    stamp(p, 6, diag)
    yr = G2.y_reads()
    for g in yr[:4]: p.add(g)
    m, rest = weave(G2.r_mfmas(), yr[4:] + G2.g_part_writes(), start=0, every=2, pred=ismfma)
    p.add(m).add(rest)
    p.add(G2.finish())
    if diag:
        p('s_waitcnt vmcnt(0)'); stamp(p, 7, diag); stamp_out(p, 0, 'EXIT')
    p('EXIT:'); return p
if __name__ == '__main__':
    diag = 'diag' in sys.argv[2:]
    cfg = dict(a.split('=') for a in sys.argv[2:] if '=' in a)
    st = {}
    body = finalize(kernel(diag, cfg), st) + '    s_endpgm\n' + ''.join(tail); print(st)
    open(sys.argv[1], 'w').write(build_file([dict(name=NAME, grid=256, block=256, lds=163840, body=body, nfv=512, accum=256)], single=True))
```

```python
from k_common import *
import k_g1 as G1, k_p2 as P2, k_g2 as G2
NAME = 'recurrent_scan__spectral_gfnet__mixer_channel_mlp__prompt_kernel'
ZF, HF, YF = FL_OFF, FL_OFF + 4096, FL_OFF + 8192
vOOB, vPA, vP, vONEI = 5, 6, 7, 8
tail = []
def poll_issue(srd, va, so): return Prog()(f'buffer_load_dword v{vP}, v{va}, {srd}, {so} offen sc1')
def poll_check(name, srd, va, so):
    p = Prog()
    p(f'v_cmp_ne_u32 vcc, 1, v{vP}\ns_cbranch_vccnz SPIN_{name}\nBACK_{name}:')
    tail.append(f'''SPIN_{name}:
    s_mov_b32 s3, 0
LOOP_{name}:
    buffer_load_dword v{vP}, v{va}, {srd}, {so} offen sc1
    s_add_u32 s3, s3, 1
    s_cmp_gt_u32 s3, 20000
    s_cbranch_scc1 BACK_{name}
    s_waitcnt vmcnt(0)
    v_cmp_ne_u32 vcc, 1, v{vP}
    s_cbranch_vccnz LOOP_{name}
    s_branch BACK_{name}
''')
    return p
def flag_store(tag, scalc):
    p = Prog(); p(scalc); p.wvm(tag)
    p(f'buffer_store_dword v{vONEI}, v{vOOB}, {WS}, s56 offen sc1')
    return p
def w2rd(gam):
    L = G2.w2_reads(gam)
    for g in L: g.l[-1].tag = f'w2r{gam}'
    return L
def w2ld(gam):
    L = G2.w2_dma(gam)
    prev = [k for k in range(gam) if G2.SLOT[k] == G2.SLOT[gam]]
    if prev:
        g = Prog(); g.wdsn(f'w2r{prev[-1]}'); L[0] = g.add(L[0])
    return L
def flat(L):
    p = Prog()
    for g in L: p.add(g)
    return p
isvalu = lambda x: x.kind == 'valu'
def kernel(diag, cfg):
    p = Prog(); prologue(p, 'EXIT', diag)
    p(f'''s_cmp_lg_u32 s2, 0
    s_cbranch_scc1 NOZERO
    v_mov_b32 v224, 0
    v_mov_b32 v225, 0
    v_mov_b32 v226, 0
    v_mov_b32 v227, 0
    s_mul_i32 s52, s{sW}, 3072
    s_add_u32 s52, s52, {FL_OFF}
    v_lshlrev_b32 v228, 4, v0''')
    for k in range(3): p(f'buffer_store_dwordx4 v[224:227], v228, {WS}, s52 offen offset:{1024*k} sc1')
    p('NOZERO:\ns_waitcnt lgkmcnt(0)')
    G1.g1_addr(p)
    xl, wl = G1.g1_xl, G1.g1_wl
    for g in xl(0) + wl(0): p.add(g)
    p.add(G1.g1_consts())
    for g in xl(1): p.add(g)
    p.add(G1.d32_consts()).add(G2.w2_addr(224)).add(P2.p2_ids())
    p(f's_or_b32 s52, s2, s{sW}\nv_add_u32 v53, s52, v0\nv_lshlrev_b32 v53, 8, v53\nv_mov_b32 v55, 1')
    for g in wl(1) + xl(2): p.add(g)
    stamp(p, 1, diag)
    hook = Prog()(f'buffer_store_dword v55, v53, {DBG}, 0 offen sc1')
    w2, w3 = wl(2), wl(3)
    go = Prog()(f'v_mov_b32 v{vPA}, 0\nv_mov_b32 v{vONEI}, 1\nv_min_u32 v{vOOB}, 1, v0\nv_lshlrev_b32 v{vOOB}, 28, v{vOOB}').add(poll_issue(DBG, vPA, 0))
    sched = {0: xl(3), 1: w2[:4], 2: w2[4:], 3: xl(4), 4: xl(5), 5: w3[:4], 6: w3[4:] + G1.b1_loads(), 7: xl(6), 8: xl(7),
             9: w2ld(0), 10: w2ld(1), 11: [go], 12: w2ld(2) + w2ld(3), 13: w2ld(4) + w2ld(5)[:2], 14: w2ld(5)[2:] + w2ld(6), 15: w2ld(7)}
    xds = {12: w2rd(0), 14: w2rd(1)}
    fill = P2.p2_fwd_consts().add(P2.p2_inv_consts())
    p.add(G1.g1_main(sched, hook=hook, fill=fill, xds=xds))
    stamp(p, 2, diag)
    a, b = G1.g1_stats_z()
    p.add(a).add(b)
    p.add(poll_check('go', DBG, vPA, 0))
    stamp(p, 3, diag)
    pre, Lg = G1.g1_gelu(); p.add(pre)
    zfl = flag_store('zst', f's_lshl2_add_u32 s56, s{sHC}, s{sW}\ns_lshl4_add_u32 s56, s56, s{sRB}\ns_lshl2_add_u32 s56, s56, {ZF}')
    zpi = Prog()(f's_lshr_b32 s60, s62, 3\ns_lshl2_add_u32 s60, s{sHC2}, s60\ns_lshl_b32 s60, s60, 6\ns_add_u32 s60, s60, {ZF}\nv_lshlrev_b32 v{vPA}, 2, v1').add(poll_issue(WS, vPA, 's60'))
    wl2 = P2.p2_wloads()
    fills = {0: w2rd(2) + w2rd(3) + w2ld(8), 1: w2rd(4) + w2rd(5) + w2ld(9), 2: [zfl] + w2rd(6) + w2ld(10) + wl2[:4], 3: w2rd(7) + w2ld(11) + wl2[4:],
             4: w2ld(12), 5: w2ld(13), 6: [zpi]}
    for n, g in enumerate(Lg):
        f = fills.get(n, [])
        g, rest = weave(g, f, start=0, every=max(1, 48//max(1, len(f))), pred=isvalu); p.add(g).add(rest)
    stamp(p, 4, diag)
    for k in range(8, 14): p.add(flat(w2rd(k)))
    p.add(G2.h_addr(40))
    p.add(poll_check('z', WS, vPA, 's60'))
    p.add(P2.p2_zloads())
    p.add(flag_store('hst', f's_lshl2_add_u32 s56, s{sRB}, s{sW}\ns_lshl4_add_u32 s56, s56, s{sHC}\ns_lshl2_add_u32 s56, s56, {HF}'))
    p.add(P2.p2_fwd())
    p(f's_lshl_b32 s60, s{sBP}, 7\ns_lshl4_add_u32 s60, s{sW}, s60\ns_add_u32 s60, s60, {HF}\nv_and_b32 v{vPA}, 0x13, v0\nv_lshlrev_b32 v{vPA}, 2, v{vPA}')
    p.add(poll_issue(WS, vPA, 's60'))
    p.add(P2.p2_inv('CP0'))
    stamp(p, 5, diag)
    p.add(poll_check('h', WS, vPA, 's60'))
    hl = G2.h_loads()
    for g in hl[:12]: p.add(g)
    yfl = flag_store('yst', f's_lshl4_add_u32 s56, s{sW}, s{sHC2}\ns_lshl4_add_u32 s56, s56, s{sCP}\ns_lshl2_add_u32 s56, s56, {YF}')
    p.add(yfl)
    ypi = Prog()(f's_lshr_b32 s60, s{sBP}, 3\ns_lshl2_add_u32 s60, s60, s{sW}\ns_lshl_b32 s60, s60, 8\ns_add_u32 s60, s60, {YF}\nv_lshlrev_b32 v{vPA}, 2, v0').add(poll_issue(WS, vPA, 's60'))
    yl = G2.y_loads(); yl[0] = poll_check('y', WS, vPA, 's60').add(yl[0])
    hl[44] = hl[44].add(ypi)
    c = G2.g_consts(36).add(G2.h_consts(36)).add(G2.fin_addr(36))
    c0 = Prog(); c0.l = c.l[:60]; c.l = c.l[60:]; p.add(c0)
    m, rest = weave(G2.g2_mfmas(), hl[12:] + [a.add(b) for a, b in zip(yl[0::2], yl[1::2])] + G2.fin_loads(), every=2, pred=ismfma)
    m, rest2 = weave(m, c, per=3, pred=ismfma)
    p.add(m).add(rest).add(rest2)
    stamp(p, 6, diag)
    yr = G2.y_reads()
    for g in yr[:4]: p.add(g)
    m, rest = weave(G2.r_mfmas(), yr[4:] + G2.g_part_writes(), start=0, every=2, pred=ismfma)
    p.add(m).add(rest)
    p.add(G2.finish())
    if diag:
        p('s_waitcnt vmcnt(0)'); stamp(p, 7, diag)
        if 'leak' in cfg:
            i = int(cfg['leak'])
            p(f'''s_waitcnt lgkmcnt(0)
            s_add_u32 s52, s{86+2*i}, 4000
            s_mov_b32 s3, 0
            LEAK:
            s_memrealtime s[54:55]
            s_add_u32 s3, s3, 1
            s_cmp_gt_u32 s3, 100000
            s_cbranch_scc1 EXIT
            s_waitcnt lgkmcnt(0)
            s_sub_u32 s54, s54, s52
            s_cmp_lt_i32 s54, 0
            s_cbranch_scc1 LEAK''')
        else: stamp_out(p, 0, 'EXIT')
    p('EXIT:'); return p
if __name__ == '__main__':
    diag = 'diag' in sys.argv[2:]
    cfg = dict(a.split('=') for a in sys.argv[2:] if '=' in a)
    st = {}
    body = finalize(kernel(diag, cfg), st) + '    s_endpgm\n' + ''.join(tail); print(st)
    open(sys.argv[1], 'w').write(build_file([dict(name=NAME, grid=256, block=256, lds=163840, body=body, nfv=512, accum=256)], single=True))
```

```python
import sys, struct, math
sys.path.insert(0, 'gen')
from prog import *
from asmlib import build_file
def fx(x): return '0x%08x' % struct.unpack('<I', struct.pack('<f', x))[0]
def V(a, n=1): return f'v{a}' if n == 1 else f'v[{a}:{a+n-1}]'
def A(a, n=1): return f'a{a}' if n == 1 else f'a[{a}:{a+n-1}]'
X, WR, WI, W1, B1, W2, B2, OUT, DBG, WS = [f's[{4+4*i}:{7+4*i}]' for i in range(10)]
sW, sRB, sHC, sCP, sHC2, sBP, sCB, sXOR = range(44, 52)
H_OFF, Z_OFF, Y_OFF, FL_OFF = 0, 8 << 20, 10 << 20, 12 << 20
L_F, L_ZT, L_CS, L_XP = 135168, 151552, 159744, 135168
WST = 33792; W1OFF = [26624, 0, 11264]; XSOFF = [18432, 22528, 7168]; sLB = 66
STAMP_OFF = 128 << 20
M16 = 'v_mfma_f32_16x16x32_bf16'; M32 = 'v_mfma_f32_32x32x16_bf16'
CVT = 'v_cvt_pk_bf16_f32'

def prologue(p, exitl, diag):
    p(f's_cmp_ge_u32 s2, 256\ns_cbranch_scc1 {exitl}')
    if diag:
        for i in range(88, 102): p(f's_mov_b32 s{i}, 0')
        p('s_memrealtime s[86:87]')
    offs = [0, 8, 16, 32, 40, 48, 56, 64, 72, 80]
    size = [2097152, 2048*514, 2048*514, 512*3584, 3584, 1792*1024, 1024, 2097152, 256, 256 << 20]
    order = [0, 3, 9, 4, 5, 1, 2, 6, 7, 8]
    for i in order: p(f's_load_dwordx2 s[{4+4*i}:{5+4*i}], s[0:1], {offs[i]}')
    p(f'''v_lshrrev_b32 v1, 6, v0
    v_and_b32 v0, 63, v0
    s_and_b32 s52, s2, 7
    v_readfirstlane_b32 s{sW}, v1
    s_lshr_b32 s53, s2, 3
    v_and_b32 v1, 15, v0
    v_lshrrev_b32 v2, 4, v0
    s_lshr_b32 s54, s52, 1
    s_and_b32 s55, s53, 3
    s_lshl2_add_u32 s{sRB}, s54, s55
    s_and_b32 s54, s52, 1
    s_lshr_b32 s{sCB}, s53, 2
    s_lshl3_add_u32 s{sHC}, s54, s{sCB}
    s_lshl2_add_u32 s{sBP}, s52, s55
    s_and_b32 s54, s53, 1
    s_lshl1_add_u32 s{sCP}, s52, s54
    s_lshr_b32 s{sHC2}, s53, 1
    s_mul_i32 s{sLB}, s{sW}, {WST}''')
    for i in order: p(f's_mov_b32 s{6+4*i}, {size[i]}\ns_mov_b32 s{7+4*i}, 0x20000')

STAMPS = []
def stamp(p, name):
    if name in STAMPS:
        i = STAMPS.index(name) + 1
        p(f's_memrealtime s[{86+2*i}:{87+2*i}]')
    return p
def stamp_out(p, kidx, lab):
    p(f'''s_waitcnt vmcnt(0) lgkmcnt(0)
    s_cmp_lg_u32 s{sW}, 0
    s_cbranch_scc1 {lab}
    s_lshl_b32 s52, s2, 6
    s_add_u32 s52, s52, {STAMP_OFF + kidx*65536}
    v_mov_b32 v3, s52
    v_cmp_eq_u32 vcc, 0, v0
    s_and_saveexec_b64 s[54:55], vcc''')
    for i in range(8):
        p(f'v_mov_b32 v4, s{86+2*i}\nv_mov_b32 v5, s{87+2*i}\nbuffer_store_dwordx2 v[4:5], v3, {WS}, 0 offen offset:{8*i}\ns_nop 1')
    p('s_waitcnt vmcnt(0)')
def ismfma(x): return x.kind == 'mfma'
```

```python
from k_common import *
vDMA, vT, vF, vONE, vD32, vXO, vXR, vB1, vSG, vHID, vXF, vTMP = 5, 12, 16, 20, 24, 40, 44, 46, 48, 56, 112, 192
aX, aFR, aCS, aSUM, aSQ = 96, 128, 200, 228, 236
def g1_addr(p):
    p(f'''s_add_u32 s52, s{sRB}, s{sHC}
    s_and_b32 s52, s52, 3
    s_lshl2_add_u32 s53, s52, s{sW}
    s_lshl_b32 s{sXOR}, s53, 6
    s_lshl2_add_u32 s54, s{sRB}, s{sW}
    s_lshl_b32 s54, s54, 10
    s_and_b32 s55, s{sW}, 1
    s_lshl_b32 s55, s55, 2
    v_and_b32 v{vTMP}, 7, v0
    v_xor_b32 v{vTMP}, v{vTMP}, v2
    v_xor_b32 v{vTMP}, s55, v{vTMP}
    v_lshrrev_b32 v{vXO}, 3, v0
    v_lshlrev_b32 v{vXO}, 16, v{vXO}
    v_lshl_add_u32 v{vXO}, v{vTMP}, 4, v{vXO}
    v_add_u32 v{vXO}, s54, v{vXO}
    v_xor_b32 v{vXO+1}, 64, v{vXO}
    v_add_u32 v{vXO+2}, {16*65536-2048}, v{vXO}
    v_add_u32 v{vXO+3}, {24*65536-3072}, v{vXO+1}
    v_add_u32 v{vXO+1}, {8*65536-1024}, v{vXO+1}
    s_and_b32 s59, s{sXOR}, 0x380
    s_mul_i32 s55, s{sHC}, 224''')
    for m in range(4):
        p(f's_xor_b32 s52, s53, {4*m}\ns_mul_i32 s52, s52, 114688\ns_add_u32 s{82+m}, s52, s55')
def g1_dma_addr(q):
    p = Prog(); t = vTMP; d = vDMA + q
    p(f'''v_add_u32 v{t}, {64*q}, v0
    v_mul_u32_u24 v{t+1}, 4682, v{t}
    v_lshrrev_b32 v{t+1}, 16, v{t+1}
    v_mul_u32_u24 v{t+2}, 14, v{t+1}
    v_sub_u32 v{t}, v{t}, v{t+2}
    v_lshrrev_b32 v{t+2}, 1, v{t+1}
    v_xor_b32 v{t+2}, v{t+2}, v{t+1}
    v_and_b32 v{t+2}, 4, v{t+2}
    v_mul_u32_u24 v{t+2}, 3, v{t+2}
    v_xor_b32 v{t+1}, v{t+2}, v{t+1}
    v_mul_u32_u24 v{t+1}, 3584, v{t+1}
    v_lshl_add_u32 v{d}, v{t}, 4, v{t+1}''')
    if q & 3: p(f'v_subrev_u32 v{d}, {(q&3)*1024}, v{d}')
    return p
def g1_wl(m):
    L = []
    for q in range(7):
        g = Prog()
        if q in (0, 4): g(f's_add_u32 m0, s{sLB}, {W1OFF[m%3] + (q>>2)*4096}')
        g(f'buffer_load_dwordx4 v{vDMA+q}, {W1}, s{82+m} offen offset:{(q&3)*1024} lds', f'dma{m}')
        L.append(g)
    return L
def g1_xl(u):
    L = []
    for q in range(4):
        g = Prog()
        if q == 0: g(f's_add_u32 m0, s{sLB}, {XSOFF[u%3]}\ns_xor_b32 s57, s59, {u*128}')
        g(f'buffer_load_dwordx4 v{vXO+q}, {X}, s57 offen offset:{q*1024} lds', f'xd{u}')
        L.append(g)
    return L
def g1_consts():
    p = Prog(); t = vTMP
    p(f'''v_lshrrev_b32 v{t}, 1, v2
    v_and_b32 v{t+1}, 1, v2
    v_lshlrev_b32 v{t}, 4, v{t}
    v_lshl_add_u32 v{t}, v{t+1}, 2, v{t}
    v_lshrrev_b32 v{t+1}, 2, v1
    v_add_u32 v{t}, v{t}, v{t+1}
    v_mul_u32_u24 v{t}, 224, v{t}
    v_and_b32 v{t+1}, 3, v1
    v_lshl_add_u32 v{t}, v{t+1}, 3, v{t}
    v_lshlrev_b32 v{t+2}, 4, v0
    v_cmp_eq_u32 s[76:77], 1, v{t+1}
    v_cmp_eq_u32 s[78:79], 2, v{t+1}
    v_cmp_eq_u32 s[80:81], 3, v{t+1}''')
    for i in range(4):
        p(f'''s_xor_b32 s52, s{sW}, {i}
        s_mul_i32 s53, s52, {WST}
        s_lshl_b32 s52, s52, 11
        s_add_u32 s52, s52, {L_F}
        v_add_u32 v{vT+i}, s53, v{t}
        v_add_u32 v{vF+i}, s52, v{t+2}
        v_mov_b32 v{vONE+i}, 0x3f803f80''')
    p(f'''v_lshrrev_b32 v{t+3}, 1, v1
    v_xor_b32 v{t+3}, v{t+3}, v2
    v_lshlrev_b32 v{t+3}, 4, v{t+3}
    v_lshl_add_u32 v{t+3}, v1, 7, v{t+3}
    v_add_u32 v{vXR}, s{sLB}, v{t+3}
    v_xor_b32 v{vXR+1}, 64, v{vXR}
    v_and_b32 v{vSG}, 1, v1
    v_lshlrev_b32 v{vSG}, 31, v{vSG}
    v_xor_b32 v{vSG}, -1.0, v{vSG}''')
    k2f, g8, ang, c, s = t, t+1, t+2, t+4, t+12
    p(f'''s_lshl_b32 s52, s{sHC}, 4
    s_add_u32 s52, s52, 1
    v_add_u32 v{k2f}, s52, v1
    v_cvt_f32_u32 v{k2f}, v{k2f}
    v_mul_f32 v{k2f}, {fx(1/512)}, v{k2f}
    v_lshlrev_b32 v{g8}, 3, v2''')
    for m in range(2):
        p(f'''s_xor_b32 s52, s{sXOR}, {m*256}
        s_lshr_b32 s52, s52, 1
        v_add_u32 v{ang}, s52, v{g8}
        v_cvt_f32_u32 v{ang}, v{ang}
        v_mul_f32 v{ang}, v{ang}, v{k2f}''')
        for j in range(8):
            p(f'v_cos_f32 v{c+j}, v{ang}\nv_sin_f32 v{s+j}, v{ang}')
            if j < 7: p(f'v_add_f32 v{ang}, v{ang}, v{k2f}')
        for j in range(4):
            p(f'{CVT} v{t+20+j}, v{c+2*j}, v{c+2*j+1}\n{CVT} v{t+24+j}, -v{s+2*j}, -v{s+2*j+1}')
        p(f'ds_write_b128 v{vF}, {V(t+20,4)} offset:{m*8192}\nds_write_b128 v{vF}, {V(t+24,4)} offset:{m*8192+1024}')
    return p
def d32_consts():
    p = Prog(); t = vTMP
    lf, ang, c, s = t, t+1, t+4, t+12
    p(f'''v_cvt_f32_u32 v{lf}, v1
    v_cvt_f32_u32 v{ang}, v2
    v_mul_f32 v{lf}, {fx(1/32)}, v{lf}
    v_mul_f32 v{ang}, 4.0, v{ang}
    v_mul_f32 v{ang}, v{ang}, v{lf}''')
    for j in range(8):
        p(f'v_cos_f32 v{c+j}, v{ang}\nv_sin_f32 v{s+j}, v{ang}')
        if j == 3: p(f'v_fmamk_f32 v{ang}, v{lf}, {fx(13.0)}, v{ang}')
        elif j < 7: p(f'v_add_f32 v{ang}, v{ang}, v{lf}')
    for j in range(4):
        p(f'''{CVT} v{vD32+j}, v{c+2*j}, v{c+2*j+1}
        {CVT} v{vD32+4+j}, v{s+2*j}, v{s+2*j+1}
        {CVT} v{vD32+8+j}, v{c+2*j}, -v{c+2*j+1}
        {CVT} v{vD32+12+j}, v{s+2*j}, -v{s+2*j+1}''')
    return p
def b1_loads():
    g = Prog()
    g(f's_mul_i32 s58, s{sHC}, 224\nv_lshlrev_b32 v54, 3, v0\nbuffer_load_dwordx2 {V(vB1,2)}, v54, {B1}, s58 offen')
    return [g]
def g1_reads(st):
    m, i = st >> 2, st & 3; fb = aFR + (st & 1)*36; u = st >> 1
    L = []
    if not st & 1:
        for ii in range(2):
            for tt in range(2):
                L.append(Prog()(f'ds_read_b128 {A(aX+((u&1)*4+ii*2+tt)*4,4)}, v{vXR+ii} offset:{XSOFF[u%3]+tt*2048}'))
    for n in range(7):
        for hh in range(2):
            L.append(Prog()(f'ds_read_b64_tr_b16 {A(fb+4*n+2*hh,2)}, v{vT+i} offset:{W1OFF[m%3] + hh*1792 + n*32}'))
    for t in range(2):
        L.append(Prog()(f'ds_read_b128 {A(fb+28+4*t,4)}, v{vF+i} offset:{(m&1)*8192 + t*1024}'))
    return L
def g1_mfmas(st):
    m, i = st >> 2, st & 3; fb = aFR + (st & 1)*36
    p = Prog()
    xf = lambda tt: A(aX + ((st&3)*2+tt)*4, 4)
    c = lambda r: r if st else '0'
    for tt in range(2):
        p(f'{M16} {A(aSUM+4*tt,4)}, {V(vONE,4)}, {xf(tt)}, {c(A(aSUM+4*tt,4))}')
        p(f'{M16} {A(aSQ+4*tt,4)}, {xf(tt)}, {xf(tt)}, {c(A(aSQ+4*tt,4))}')
    for n in range(7):
        for tt in range(2):
            d = V(vHID + (2*n+tt)*4, 4)
            p(f'{M16} {d}, {A(fb+4*n,4)}, {xf(tt)}, {c(d)}')
        if i == 0: p(f'{M16} {A(aCS+4*n,4)}, {V(vONE,4)}, {A(fb+4*n,4)}, {c(A(aCS+4*n,4))}')
    for t in range(2):
        for tt in range(2):
            d = V(vXF + (2*t+tt)*4, 4)
            p(f'{M16} {d}, {xf(tt)}, {A(fb+28+4*t,4)}, {c(d)}')
    return p
def g1_main(sched, hook=None, lstart=4, levery=4, fill=None, xds={}):
    p = Prog(); t = vTMP + 24
    p.wvm('xd0'); p.wvm('dma0'); p.wds()
    stamp(p, 'd0')
    for g in g1_reads(0): p.add(g)
    for st in range(16):
        mf = g1_mfmas(st)
        stamp(p, f's{st}')
        pre = Prog(); pre.wds()
        if st < 15:
            rd = g1_reads(st+1)
            if (st & 3) == 3: pre.wvm(f'dma{(st+1)>>2}')
            if st & 1: pre.wvm(f'xd{(st+1)>>1}')
            if (st & 3) == 0 or st == 14:
                pre('s_barrier')
                if hook and st == 0: pre.add(hook)
            rd[0] = pre.add(rd[0])
            if len(rd) > 16: rd = [rd[0].add(rd[1]), rd[2].add(rd[3])] + rd[4:]
            mf, rest = weave(mf, rd, start=2, pred=ismfma); assert not rest.l
        ex = Prog()
        if st == 8:
            for k in range(16): ex(f'v_mul_f32 v{vXF+k}, v{vSG}, v{vXF+k}')
        if st == 13:
            ex(f's_lshl_b32 s52, s{sW}, 9\ns_add_u32 s52, s52, {L_CS}\nv_lshlrev_b32 v55, 2, v1\nv_add_u32 v55, s52, v55')
            for n in range(7): ex(f'ds_write_b32 v55, a{aCS+4*n} offset:{64*n}')
        if st == 14:
            ex(f'v_and_b32 v55, 31, v0\nv_lshlrev_b32 v55, 4, v55\nv_add_u32 v55, {L_CS}, v55')
            for k in range(4): ex(f'ds_read_b128 {V(vTMP+4*k,4)}, v55 offset:{512*k}')
            for k in range(2): ex(f'v_lshlrev_b32 v{vTMP+16+2*k}, 16, v{vB1+k}\nv_and_b32 v{vTMP+17+2*k}, 0xffff0000, v{vB1+k}')
        if st == 15:
            for k in range(4): ex(f'v_add_f32 v{vTMP+k}, v{vTMP+k}, v{vTMP+4+k}\nv_add_f32 v{vTMP+8+k}, v{vTMP+8+k}, v{vTMP+12+k}')
            for k in range(4): ex(f'v_add_f32 v{vTMP+k}, v{vTMP+k}, v{vTMP+8+k}')
            ex(f'v_lshlrev_b32 v54, 4, v0\nv_add_u32 v54, {L_CS+2560}, v54')
            ex(f'ds_write_b128 v55, {V(vTMP,4)} offset:2048\nds_write_b128 v54, {V(vTMP+16,4)}')
        for g in xds.get(st, []): ex.add(g)
        if fill is not None and not ex.l: mf, fill = weave(mf, fill, pred=ismfma)
        mf, rest = weave(mf, ex, start=3 if st < 15 else 0, pred=ismfma); mf.add(rest)
        ld = sched.get(st, []); ev = levery if len(ld) <= 4 else max(1, 18//len(ld))
        mf, rest = weave(mf, ld, start=lstart, every=ev, pred=ismfma); mf.add(rest)
        p.add(mf)
    assert fill is None or not fill.l, len(fill.l)
    return p
vRS, vNM = 12, 14
def g1_stats_z():
    p = Prog(); t = vTMP
    p(f'''v_lshrrev_b32 v{t}, 2, v1
    v_lshl_add_u32 v{t}, v{t}, 4, v1
    v_lshlrev_b32 v{t}, 2, v{t}
    v_lshlrev_b32 v{t+1}, 4, v2''')
    for tt in range(2):
        q = t+4+4*tt
        for r in range(4): p(f'v_accvgpr_read_b32 v{q+r}, a{aSQ+4*tt+r}')
        p(f'''v_cndmask_b32 v{q}, v{q}, v{q+1}, s[76:77]
        v_cndmask_b32 v{q}, v{q}, v{q+2}, s[78:79]
        v_cndmask_b32 v{q}, v{q}, v{q+3}, s[80:81]
        ds_bpermute_b32 v{q}, v{t}, v{q}
        v_accvgpr_read_b32 v{q+1}, a{aSUM+4*tt}
        v_mul_f32 v{q+1}, {fx(1/512)}, v{q+1}
        v_mul_f32 v{q+2}, v{q+1}, v{q+1}''')
    p(f'''s_cmp_eq_u32 s{sHC}, 15
    s_cselect_b32 s52, 15, 16
    v_cmp_eq_u32 vcc, s52, v1
    v_mov_b32 v{t+2}, {fx(2.0**-19)}
    v_mov_b32 v{t+3}, {fx(2.0**-20)}
    v_cndmask_b32 v{t+2}, v{t+2}, v{t+3}, vcc
    v_mul_f32 v{t+2}, v{t+2}, v{vSG}''')
    for tt in range(2):
        q = t+4+4*tt
        p(f'''v_mul_f32 v{q}, {fx(1/512)}, v{q}
        v_sub_f32 v{q}, v{q}, v{q+2}
        v_max_f32 v{q}, 0, v{q}
        v_add_f32 v{q+2}, {fx(1e-5)}, v{q}
        v_rsq_f32 v{q+2}, v{q+2}''')
        for r in range(4): p(f'ds_bpermute_b32 v{t+12+4*tt+r}, v{t+1}, v{q+2} offset:{4*r}')
    for tt in range(2):
        q = t+4+4*tt
        p(f'''v_mul_f32 v{q}, v{q}, v{q+2}
        v_fmaak_f32 v{q}, v{q}, v{q+2}, {fx(1e-5)}
        v_rsq_f32 v{q}, v{q}
        v_mul_f32 v{vRS+tt}, v{q}, v{q+2}
        v_mul_f32 v{vNM+tt}, v{vRS+tt}, -v{q+1}''')
    for k in range(0, 8, 2):
        p(f'v_pk_mul_f32 {V(t+12+k,2)}, {V(t+12+k,2)}, {V(t+2,2)} op_sel_hi:[1,0]')
    for tq in range(2):
        for k in range(0, 8, 2):
            p(f'v_pk_mul_f32 {V(vXF+8*tq+k,2)}, {V(vXF+8*tq+k,2)}, {V(t+12+k,2)}')
    br, bi, bn = t, t+4, t+8
    for k in range(4):
        p(f'''{CVT} v{br+k}, v{vXF+2*k}, v{vXF+2*k+1}
        {CVT} v{bi+k}, v{vXF+8+2*k}, v{vXF+8+2*k+1}
        {CVT} v{bn+k}, -v{vXF+2*k}, -v{vXF+2*k+1}''')
    z = vXF
    for ct in range(2):
        p(f'{M16} {V(z+8*ct,4)}, {V(vD32+8*ct,4)}, {V(br,4)}, 0\n{M16} {V(z+8*ct+4,4)}, {V(vD32+8*ct,4)}, {V(bi,4)}, 0')
    for ct in range(2):
        p(f'{M16} {V(z+8*ct,4)}, {V(vD32+8*ct+4,4)}, {V(bi,4)}, {V(z+8*ct,4)}\n{M16} {V(z+8*ct+4,4)}, {V(vD32+8*ct+4,4)}, {V(bn,4)}, {V(z+8*ct+4,4)}')
    p(f'''s_lshl2_add_u32 s52, s{sW}, {L_ZT}
    v_lshlrev_b32 v{t+12}, 10, v2
    v_lshl_add_u32 v{t+12}, v1, 4, v{t+12}
    v_add_u32 v{t+12}, s52, v{t+12}
    s_lshl_b32 s52, s{sW}, 11
    s_add_u32 s52, s52, {L_ZT}
    v_lshlrev_b32 v{t+13}, 4, v0
    v_add_u32 v{t+13}, s52, v{t+13}
    s_lshl2_add_u32 s52, s{sHC}, s{sW}
    s_lshl_b32 s52, s52, 7
    s_add_u32 s52, s52, s{sRB}
    s_lshl_b32 s52, s52, 8
    s_add_u32 s59, s52, {Z_OFF}
    s_add_u32 s58, s59, 16384
    v_lshlrev_b32 v{t+14}, 12, v2
    v_lshl_add_u32 v{t+14}, v1, 4, v{t+14}''')
    for ct in range(2):
        for r in range(4):
            p(f'{CVT} v{t+4*ct+r}, v{z+8*ct+r}, v{z+8*ct+4+r}\nds_write_b32 v{t+12}, v{t+4*ct+r} offset:{ct*4096+r*256}')
    p.wds(); p('s_barrier')
    q = Prog()
    q(f'ds_read_b128 {V(t,4)}, v{t+13}\nds_read_b128 {V(t+4,4)}, v{t+13} offset:1024')
    q(f'buffer_store_dwordx4 {V(t,4)}, v{t+14}, {WS}, s59 offen sc1\nbuffer_store_dwordx4 {V(t+4,4)}, v{t+14}, {WS}, s58 offen sc1', 'zst')
    return p, q
def g1_gelu():
    K0 = -2*math.log2(math.e)*math.sqrt(2/math.pi); K1 = K0*0.044715
    t = 112
    pre = Prog()
    pre(f'''s_mov_b32 s74, {fx(K1)}
    v_mov_b32 v16, {fx(K0)}
    v_lshlrev_b32 v17, 4, v2
    v_add_u32 v17, {L_CS+2048}, v17
    v_lshlrev_b32 v18, 4, v0
    s_lshl2_add_u32 s52, s{sRB}, s{sW}
    s_mul_i32 s52, s52, 112
    s_mul_i32 s53, s{sHC}, 7
    s_add_u32 s52, s52, s53
    s_lshl_b32 s75, s52, 10
    s_add_u32 s57, s75, 4096
    ds_read_b128 {V(t,4)}, v17
    ds_read_b128 {V(t+8,4)}, v17 offset:512''')
    L = []
    for n in range(7):
        p = Prog(); cs = t + 4*(n & 1); bu = cs+8; u = 232; e = 236
        if n < 6: p(f'ds_read_b128 {V(t+4*((n+1)&1),4)}, v17 offset:{64*(n+1)}\nds_read_b128 {V(t+8+4*((n+1)&1),4)}, v17 offset:{512+64*(n+1)}')
        for tt in range(2):
            h = vHID + (2*n+tt)*4
            sel = 'op_sel:[0,1,0] op_sel_hi:[1,1,1]' if tt else 'op_sel_hi:[1,0,1]'
            for k in (0, 2): p(f'v_pk_fma_f32 {V(u+k,2)}, {V(cs+k,2)}, {V(vNM,2)}, {V(bu+k,2)} {sel}')
            for k in (0, 2): p(f'v_pk_fma_f32 {V(u+k,2)}, {V(h+k,2)}, {V(vRS,2)}, {V(u+k,2)} {sel}')
            for k in (0, 2): p(f'v_pk_mul_f32 {V(e+k,2)}, {V(u+k,2)}, {V(u+k,2)}')
            for k in (0, 2): p(f'v_pk_fma_f32 {V(e+k,2)}, {V(e+k,2)}, s[74:75], v[16:17] op_sel_hi:[1,0,0]')
            for k in (0, 2): p(f'v_pk_mul_f32 {V(e+k,2)}, {V(e+k,2)}, {V(u+k,2)}')
            for k in range(4): p(f'v_exp_f32 v{e+k}, v{e+k}')
            for k in (0, 2): p(f'v_pk_add_f32 {V(e+k,2)}, {V(e+k,2)}, 1.0 op_sel_hi:[1,0]')
            for k in range(4): p(f'v_rcp_f32 v{e+k}, v{e+k}')
            for k in (0, 2): p(f'v_pk_mul_f32 {V(u+k,2)}, {V(u+k,2)}, {V(e+k,2)}')
            hh = vHID + 8*n
            for k in range(2): p(f'{CVT} v{hh+2*tt+k}, v{u+2*k}, v{u+2*k+1}')
        hh = vHID + 8*n
        p(f'v_permlane16_swap_b32 v{hh}, v{hh+2}\nv_permlane16_swap_b32 v{hh+1}, v{hh+3}')
        p(f'buffer_store_dwordx4 {V(hh,4)}, v18, {WS}, s{75 if n < 4 else 57} offen offset:{(n&3)*1024} sc1', 'hst')
        L.append(p)
    return pre, L
```

```python
from k_common import *
vACC, vG, vRING, vHC = 120, 56, 184, 40
vW2O, vW2R, vHO = 49, 3, 10
SLOT = [0, 1, 2, 3, 4, 0, 5, 1, 6, 7, 2, 3, 4, 0]
sROT = 65
def grp_soff(p, gam, dst, mul16):
    p(f's_add_u32 s{dst}, s{sROT}, {gam*2048}\ns_cmp_ge_u32 s{dst}, 28672\ns_cselect_b32 s53, 28672, 0\ns_sub_u32 s{dst}, s{dst}, s53')
    if mul16: p(f's_lshl_b32 s{dst}, s{dst}, 4')
def w2_addr(t):
    p = Prog()
    p(f'''s_and_b32 s52, s{sBP}, 3
    s_lshl1_add_u32 s52, s52, s{sCB}
    s_cmp_ge_u32 s52, 7
    s_cselect_b32 s53, 7, 0
    s_sub_u32 s52, s52, s53
    s_lshl_b32 s{sROT}, s52, 12
    s_mul_i32 s52, s{sW}, {448*1024}
    s_lshl_b32 s53, s{sCB}, 7
    s_add_u32 s52, s52, s53
    v_lshrrev_b32 v{t}, 3, v0
    v_and_b32 v{t+1}, 7, v0
    v_and_b32 v{t+2}, 1, v2
    v_lshlrev_b32 v{t+2}, 2, v{t+2}
    v_xor_b32 v{t+1}, v{t+1}, v{t+2}
    v_lshlrev_b32 v{t}, 10, v{t}
    v_lshl_add_u32 v{t}, v{t+1}, 4, v{t}
    v_add_u32 v{vW2O}, s52, v{t}''')
    for q in range(1, 4): p(f'v_add_u32 v{vW2O+q}, {q*7168}, v{vW2O}')
    p(f'''v_lshrrev_b32 v{t}, 2, v1
    v_lshrrev_b32 v{t+1}, 1, v2
    v_lshl_add_u32 v{t+1}, v{t+1}, 3, v{t}
    v_lshlrev_b32 v{t+1}, 7, v{t+1}
    v_lshrrev_b32 v{t}, 1, v{t}
    s_and_b32 s52, s{sW}, 1
    v_xor_b32 v{t}, s52, v{t}
    v_lshl_add_u32 v{t+1}, v{t}, 6, v{t+1}
    v_and_b32 v{t}, 1, v1
    v_lshl_add_u32 v{t+1}, v{t}, 5, v{t+1}
    v_lshl_add_u32 v{t+1}, v{t+2}, 2, v{t+1}
    v_and_b32 v{t}, 2, v1
    v_lshl_add_u32 v{t+1}, v{t}, 2, v{t+1}
    v_add_u32 v{vW2R}, s{sLB}, v{t+1}
    v_xor_b32 v{vW2R+1}, 64, v{vW2R}''')
    return p
def h_addr(t):
    p = Prog()
    p(f'''s_lshr_b32 s52, s{sW}, 1
    s_lshl1_add_u32 s52, s{sBP}, s52
    s_xor_b32 s53, s52, 1
    s_mul_i32 s54, s{sW}, 28672
    s_mul_i32 s52, s52, 114688
    s_mul_i32 s53, s53, 114688
    s_add_u32 s52, s52, s54
    s_add_u32 s53, s53, s54
    v_lshlrev_b32 v{t}, 4, v0
    v_add_u32 v{vHO}, s52, v{t}
    v_add_u32 v{vHO+1}, s53, v{t}''')
    return p
def w2_dma(gam):
    L = []
    for q in range(4):
        g = Prog()
        if q == 0:
            grp_soff(g, gam, 67, True)
            g(f's_add_u32 m0, s{sLB}, {SLOT[gam]*4096}')
        g(f'buffer_load_dwordx4 v{vW2O+q}, {W2}, s67 offen offset:{q*1024} lds', f'w2d{gam}')
        L.append(g)
    return L
def w2_reads(gam):
    L = []
    for u in range(2):
        for ds in range(2):
            for hh in range(2):
                g = Prog()
                if not L: g.wvm(f'w2d{gam}')
                g(f'ds_read_b64_tr_b16 {A(((2*gam+u)*2+ds)*4+2*hh,2)}, v{vW2R+ds} offset:{SLOT[gam]*4096+u*2048+hh*512}')
                L.append(g)
    return L
NR = 16
def h_loads():
    L = []
    for k in range(56):
        gam, u, bs = k >> 2, (k >> 1) & 1, k & 1
        g = Prog()
        if k % 4 == 0: grp_soff(g, gam, 68, False)
        g(f'buffer_load_dwordx4 {V(vRING+4*(k%NR),4)}, v{vHO+bs}, {WS}, s68 offen offset:{u*1024} sc1')
        L.append(g)
    return L
def g2_mfmas():
    p = Prog()
    for k in range(56):
        t, bs = k >> 1, k & 1
        for ds in range(2):
            d = V(vACC + (2*bs+ds)*16, 16)
            p(f'{M32} {d}, {A((t*2+ds)*4,4)}, {V(vRING+4*(k%NR),4)}, {d if t else 0}')
    return p
def g_consts(t):
    p = Prog()
    df, kf, ang, c, s = t, t+1, t+2, t+4, t+8
    p(f'''s_lshl_b32 s54, s{sW}, 6
    s_add_u32 s54, s54, 1
    v_lshlrev_b32 v{kf}, 2, v2
    v_add_u32 v{kf}, s54, v{kf}
    v_cvt_f32_u32 v{kf}, v{kf}
    s_lshl_b32 s54, s{sCB}, 6
    v_add_u32 v{df}, s54, v1
    v_cvt_f32_u32 v{df}, v{df}
    v_mul_f32 v{df}, {fx(1/512)}, v{df}''')
    for dq in range(4):
        p(f'v_mul_f32 v{ang}, v{df}, v{kf}')
        for hq in range(4):
            for i in range(4):
                p(f'v_cos_f32 v{c+i}, v{ang}\nv_sin_f32 v{s+i}, v{ang}')
                if i < 3: p(f'v_add_f32 v{ang}, v{ang}, v{df}')
                elif hq < 3: p(f'v_fmamk_f32 v{ang}, v{df}, {fx(13.0)}, v{ang}')
                elif dq < 3: p(f'v_add_f32 v{df}, {fx(1/32)}, v{df}')
            o = vG + (hq*4+dq)*4
            p(f'{CVT} v{o}, v{c}, v{c+1}\n{CVT} v{o+1}, v{c+2}, v{c+3}\n{CVT} v{o+2}, -v{s}, -v{s+1}\n{CVT} v{o+3}, -v{s+2}, -v{s+3}')
    return p
def h_consts(t):
    p = Prog()
    af, ang, c, s = t, t+1, t+2, t+3
    p(f'''v_and_b32 v{af}, 31, v0
    v_cvt_f32_u32 v{af}, v{af}
    v_lshrrev_b32 v{ang}, 5, v0
    v_cvt_f32_u32 v{ang}, v{ang}
    v_mul_f32 v{af}, {fx(1/32)}, v{af}
    v_add_f32 v{ang}, v{ang}, v{ang}
    v_mul_f32 v{ang}, v{ang}, v{af}''')
    for kk in range(2):
        for tq in range(4):
            pp = 8*(tq >> 1) + 4*kk + (tq & 1)
            if pp: p(f'v_fmamk_f32 v{c}, v{af}, {fx(float(pp))}, v{ang}\nv_sin_f32 v{s}, v{c}\nv_cos_f32 v{c}, v{c}')
            else:
                p(f'''v_sin_f32 v{s}, v{ang}
                v_and_b32 v{c}, 1, v0
                v_lshlrev_b32 v{c}, 31, v{c}
                v_xor_b32 v{c}, -1.0, v{c}
                v_cmp_gt_u32 s[76:77], 32, v0
                v_cndmask_b32 v{s}, v{s}, v{c}, s[76:77]
                v_cos_f32 v{c}, v{ang}''')
            p(f'{CVT} v{vHC+4*kk+tq}, v{c}, -v{s}')
    return p
def y_loads():
    L = []
    g = Prog()
    g(f'''s_lshl_b32 s52, s{sBP}, 16
    s_lshl_b32 s53, s{sW}, 13
    s_add_u32 s52, s52, s53
    s_add_u32 s69, s52, {Y_OFF}
    v_sub_u32 v12, 0, v2
    v_and_b32 v12, 3, v12
    v_xor_b32 v12, v12, v0
    v_lshlrev_b32 v12, 4, v12''')
    for b in range(2):
        for h2 in range(2):
            g(f's_add_u32 m0, s{sLB}, {16384 + (b*2+h2)*4096}\ns_add_u32 s70, s69, {b*32768 + h2*4096}')
            for q in range(4):
                g(f'buffer_load_dwordx4 v12, {WS}, s70 offen offset:{q*1024} sc1 lds', f'yd{b}{h2}')
                L.append(g); g = Prog()
    return L
def y_reads():
    L = []
    g = Prog()
    g(f'''v_lshrrev_b32 v12, 2, v1
    v_sub_u32 v12, 0, v12
    v_xor_b32 v12, v12, v2
    v_and_b32 v12, 3, v12
    v_lshlrev_b32 v12, 4, v12
    v_lshl_add_u32 v12, v1, 6, v12
    v_add_u32 v12, s{sLB}, v12''')
    for b in range(2):
        for hq in range(4):
            for rt in range(2):
                if (hq & 1) == 0 and rt == 0: g.wvm(f'yd{b}{hq>>1}')
                g(f'ds_read_b128 {A(((b*4+hq)*2+rt)*4,4)}, v12 offset:{16384 + ((b*4+hq)*2+rt)*1024}')
                L.append(g); g = Prog()
    return L
vXX, vBB = 20, 28
def fin_loads():
    g = Prog()
    g(f'''s_lshr_b32 s52, s{sW}, 1
    s_lshl1_add_u32 s52, s{sBP}, s52
    s_lshl_b32 s52, s52, 10
    s_and_b32 s53, s{sW}, 1
    s_lshl1_add_u32 s53, s{sCB}, s53
    s_lshl_b32 s72, s53, 6
    s_add_u32 s71, s52, s72
    v_and_b32 v13, 32, v0
    v_lshrrev_b32 v14, 2, v0
    v_and_b32 v48, 3, v0
    v_lshlrev_b32 v14, 16, v14
    v_lshl_add_u32 v14, v48, 4, v14
    v_add_u32 v48, {16*65536-1024}, v14
    s_add_u32 m0, s{sLB}, 12288''')
    L = []
    g(f'buffer_load_dwordx4 v14, {X}, s71 offen lds\nbuffer_load_dwordx4 v48, {X}, s71 offen offset:1024 lds', 'xfin'); L.append(g)
    for k in range(2):
        g = Prog(); g(f'buffer_load_dwordx4 {V(vBB+4*k,4)}, v13, {B2}, s72 offen offset:{16*k}'); L.append(g)
    return L
def fin_xread():
    g = Prog()
    g(f'v_and_b32 v54, 31, v0\nv_lshl_add_u32 v54, v54, 6, v13\nv_add_u32 v54, s{sLB}, v54')
    g.wvm('xfin')
    g(f'ds_read_b128 {V(vXX,4)}, v54 offset:12288\nds_read_b128 {V(vXX+4,4)}, v54 offset:12304')
    return g
def r_mfmas():
    p = Prog()
    for b in range(2):
        for hq in range(4):
            for rt in range(2):
                for dq in range(4):
                    d = V(vRING + ((b*4+dq)*2+rt)*4, 4)
                    p(f'{M16} {d}, {A(((b*4+hq)*2+rt)*4,4)}, {V(vG+(hq*4+dq)*4,4)}, {d if hq else 0}')
    return p
def g_part_writes():
    L = []
    g = Prog(); g(f'v_lshlrev_b32 v15, 4, v0\nv_add_u32 v15, s{sLB}, v15')
    for sl in range(1, 4):
        for k in range(4):
            g(f'ds_write_b128 v15, {V(vACC+16*sl+4*k,4)} offset:{(sl-1)*4096+k*1024}'); L.append(g); g = Prog()
    return L
def fin_addr(t):
    p = Prog()
    p(f'''v_and_b32 v{t}, 3, v0
    v_bfe_u32 v{t+1}, v0, 3, 2
    v_lshl_add_u32 v{t}, v{t+1}, 2, v{t}
    v_lshlrev_b32 v{t}, 4, v{t}
    v_bfe_u32 v{t+1}, v0, 2, 1
    v_lshl_add_u32 v{t}, v{t+1}, 10, v{t}
    v_lshrrev_b32 v{t+1}, 5, v0
    v_lshl_add_u32 v{t}, v{t+1}, 8, v{t}
    s_lshl_b32 s54, s{sW}, 11
    s_add_u32 s54, s54, 16384
    v_add_u32 v16, s54, v{t}
    v_add_u32 v3, {2*WST}, v16
    v_lshlrev_b32 v{t}, 4, v0''')
    for sl in range(1, 4):
        p(f's_xor_b32 s54, s{sW}, {sl}\ns_mul_i32 s54, s54, {WST}\ns_add_u32 s54, s54, {(sl-1)*4096}\nv_add_u32 v{16+sl}, s54, v{t}')
    return p
vBU, vE = 248, 36
def silu_part():
    rd = Prog(); f = Prog()
    for k in range(4):
        for sl in range(1, 4):
            rd(f'ds_read_b128 {V(vACC+16*sl+4*k,4)}, v{16+sl} offset:{k*1024}')
    f(f's_mov_b32 s74, {fx(-math.log2(math.e))}')
    a = vACC
    for k4 in range(0, 16, 4):
        for k in (0, 2): f(f'v_lshlrev_b32 v{vBU+k}, 16, v{vBB+(k4+k)//2}\nv_and_b32 v{vBU+k+1}, 0xffff0000, v{vBB+(k4+k)//2}')
        for k in range(4): f(f'v_add_f32 v{a+k4+k}, v{a+k4+k}, v{vBU+k}')
        for k in range(k4, k4+4): f(f'v_add_f32 v{a+16+k}, v{a+16+k}, v{a+32+k}\nv_add_f32 v{a+k}, v{a+k}, v{a+48+k}')
        for k in range(k4, k4+4): f(f'v_add_f32 v{a+k}, v{a+k}, v{a+16+k}')
        for k in range(4): f(f'v_mul_f32 v{vE+k}, s74, v{a+k4+k}')
        for k in range(4): f(f'v_exp_f32 v{vE+k}, v{vE+k}')
        for k in range(4): f(f'v_add_f32 v{vE+k}, 1.0, v{vE+k}')
        for k in range(4): f(f'v_rcp_f32 v{vE+k}, v{vE+k}')
        for k in (k4, k4+2): f(f'v_lshlrev_b32 v{a+16+k}, 16, v{vXX+k//2}\nv_and_b32 v{a+16+k+1}, 0xffff0000, v{vXX+k//2}')
        for k in range(4): f(f'v_mul_f32 v{a+k4+k}, v{a+k4+k}, v{vE+k}')
    return rd, f
def r_pack(k):
    p = Prog(); r = vRING + 8*k
    for j in range(4): p(f'{CVT} v{r+j}, v{r+2*j}, v{r+2*j+1}')
    p(f'ds_write_b128 v15, {V(r,4)} offset:{16384+1024*k}')
    return p
def finish(sc):
    p = Prog()
    p.wds(); stamp(p, 'fb0'); p('s_barrier'); stamp(p, 'fb1')
    for ws in range(4):
        for kk in range(2):
            p(f'ds_read_b128 {A((ws*2+kk)*4,4)}, v{3 if ws >= 2 else 16} offset:{(ws&1)*WST+kk*512}')
    S = vG
    for k in range(8): p(f'{M32} {V(S,16)}, {A(4*k,4)}, {V(vHC+4*(k&1),4)}, {V(S,16) if k else 0}')
    for k in range(0, 16, 2):
        p(f'v_pk_fma_f32 {V(S+k,2)}, {V(S+k,2)}, {V(vACC+k,2)}, {V(vACC+16+k,2)}')
        p(f'{CVT} v{vXX+k//2}, v{S+k}, v{S+k+1}')
        if k in (6, 14): p(f'ds_write_b128 v54, {V(vXX+(k>>3)*4,4)} offset:{12288+(k>>3)*16}')
    p.wds()
    p(f'ds_read_b128 {V(vXX,4)}, v15 offset:12288\nds_read_b128 {V(vXX+4,4)}, v15 offset:13312')
    p(f'buffer_store_dwordx4 {V(vXX,4)}, v14, {OUT}, s71 offen {sc}\nbuffer_store_dwordx4 {V(vXX+4,4)}, v48, {OUT}, s71 offen offset:1024 {sc}')
    return p
def w2_l2pf():
    L = []
    g = Prog()
    g(f'''s_and_b32 s52, s{sBP}, 3
    s_lshl2_add_u32 s52, s{sW}, s52
    s_mul_i32 s52, s52, {112*1024}
    s_lshl_b32 s53, s{sCB}, 7
    s_add_u32 s52, s52, s53
    s_add_u32 s53, s52, {48*1024}
    v_lshlrev_b32 v222, 10, v0
    buffer_load_dword v223, v222, {W2}, s52 offen
    buffer_load_dword v222, v222, {W2}, s53 offen''')
    return [g]
```

```python
from k_common import *
vFW, vIV, vTMP = 128, 192, 224
vWV, vXA, aZ = 240, 24, 224
def p2_ids():
    p = Prog()
    p(f'''s_sub_u32 s61, 32, s{sCP}
    s_cmp_eq_u32 s{sCP}, 0
    s_cselect_b32 s61, 16, s61
    s_cmp_lt_u32 s{sW}, 2
    s_cselect_b32 s62, s{sCP}, s61''')
    return p
def p2_fwd_consts(t=vTMP):
    p = Prog()
    kf, ang, c, s = t, t+1, t+2, t+3
    p(f'''s_and_b32 s54, s{sW}, 1
    s_lshl_b32 s54, s54, 10
    s_add_u32 s54, s54, s62
    v_lshlrev_b32 v{kf}, 5, v1
    v_add_u32 v{kf}, s54, v{kf}
    v_cvt_f32_u32 v{kf}, v{kf}
    v_cvt_f32_u32 v{ang}, v2
    v_mul_f32 v{kf}, {fx(1/2048)}, v{kf}
    v_mul_f32 v{ang}, 4.0, v{ang}
    v_mul_f32 v{ang}, v{ang}, v{kf}''')
    for q in range(4):
        for j in range(4):
            p(f'v_cos_f32 v{c}, v{ang}\nv_sin_f32 v{s}, v{ang}')
            if j < 3: p(f'v_add_f32 v{ang}, v{ang}, v{kf}')
            elif q < 3: p(f'v_fmamk_f32 v{ang}, v{kf}, {fx(13.0)}, v{ang}')
            C, S, nC, nS = f'v{c}', f'v{s}', f'-v{c}', f'-v{s}'
            rot = [(C, S, nS), (nS, C, nC), (nC, nS, S), (S, nC, C)][j]
            r = lambda et, ri: vFW + ((et*2+ri)*4+q)*4 + j
            p(f'{CVT} v{r(0,0)}, {C}, {S}\n{CVT} v{r(0,1)}, {nS}, {C}\n{CVT} v{r(1,0)}, {rot[0]}, {rot[1]}\n{CVT} v{r(1,1)}, {rot[2]}, {rot[0]}')
    return p
def p2_inv_consts(t=vTMP):
    p = Prog()
    bf, st, ang, c, s = t, t+1, t+2, t+3, t+4
    p(f'''s_lshl_b32 s54, s{sW}, 4
    v_add_u32 v{bf}, s54, v1
    v_cvt_f32_u32 v{bf}, v{bf}
    v_mul_f32 v{st}, {fx(1/64)}, v{bf}
    v_mul_f32 v{bf}, {fx(1/2048)}, v{bf}''')
    for cs in range(2):
        p(f'''v_lshlrev_b32 v{ang}, 7, v2
        v_add_u32 v{ang}, s{61 if cs else sCP}, v{ang}
        v_cvt_f32_u32 v{ang}, v{ang}
        v_mul_f32 v{ang}, v{ang}, v{bf}''')
        for jj in range(2):
            for r in range(4):
                p(f'v_cos_f32 v{c}, v{ang}\nv_sin_f32 v{s}, v{ang}')
                if r < 3: p(f'v_add_f32 v{ang}, v{ang}, v{st}')
                elif jj == 0: p(f'v_fmamk_f32 v{ang}, v{st}, {fx(13.0)}, v{ang}')
                R = lambda ri: vIV + ((cs*2+ri)*2+jj)*4 + r
                p(f'{CVT} v{R(0)}, v{c}, -v{s}\n{CVT} v{R(1)}, v{s}, v{c}')
    return p
def p2_wloads():
    L = []
    g = Prog()
    g(f'''s_and_b32 s52, s{sW}, 1
    s_lshl_b32 s52, s52, 10
    s_add_u32 s52, s52, s62
    s_mul_i32 s52, s52, 514
    s_lshl_b32 s53, s{sHC2}, 5
    s_add_u32 s63, s52, s53
    v_mul_u32_u24 v9, {128*514}, v2
    v_lshl_add_u32 v9, v1, 1, v9''')
    for k in range(8):
        et, r = k >> 2, k & 3
        g(f'v_mov_b32 v{vWV+k}, 0\nv_mov_b32 v{vWV+8+k}, 0\ns_add_u32 s64, s63, {(16*et+r)*32*514}')
        g(f'buffer_load_short_d16_hi v{vWV+k}, v9, {WR}, s64 offen offset:2')
        g(f'buffer_load_short_d16_hi v{vWV+8+k}, v9, {WI}, s64 offen offset:2')
        L.append(g); g = Prog()
    return L
def p2_zloads():
    p = Prog()
    p(f'''s_lshl_b32 s52, s{sHC2}, 5
    s_add_u32 s52, s52, s62
    s_lshl_b32 s52, s52, 12
    s_add_u32 s52, s52, {Z_OFF}
    v_lshlrev_b32 v18, 4, v0''')
    for q in range(4): p(f'buffer_load_dwordx4 {A(aZ+4*q,4)}, v18, {WS}, s52 offen offset:{1024*q} sc1')
    return p
def p2_fwd():
    p = Prog(); t = vTMP
    for q in range(4):
        for k in range(4):
            d = V(vXA+4*k, 4)
            p(f'{M16} {d}, {V(vFW+(k*4+q)*4,4)}, {A(aZ+4*q,4)}, {d if q else 0}')
    p(f'''s_lshl_b32 s52, s{sW}, 11
    s_add_u32 s52, s52, {L_XP}
    v_add_u32 v16, s52, v18
    v_add_u32 v17, {L_XP}, v18''')
    for et in range(2):
        xr, xi, wr, wi = vXA+8*et, vXA+8*et+4, vWV+4*et, vWV+8+4*et
        for k in (0, 2):
            p(f'v_pk_mul_f32 {V(t+k,2)}, {V(xr+k,2)}, {V(wr+k,2)}\nv_pk_mul_f32 {V(t+4+k,2)}, {V(xr+k,2)}, {V(wi+k,2)}')
        for k in (0, 2):
            p(f'v_pk_fma_f32 {V(t+k,2)}, {V(xi+k,2)}, {V(wi+k,2)}, {V(t+k,2)} neg_lo:[1,0,0] neg_hi:[1,0,0]')
            p(f'v_pk_fma_f32 {V(t+4+k,2)}, {V(xi+k,2)}, {V(wr+k,2)}, {V(t+4+k,2)}')
        for r in range(4): p(f'{CVT} v{t+8+4*et+r}, v{t+r}, v{t+4+r}')
        p(f'ds_write_b128 v16, {V(t+8+4*et,4)} offset:{1024*et}')
    p.wds(); p('s_barrier')
    return p
def p2_inv(lab):
    p = Prog(); t = vTMP; va = vFW
    for k in range(8): p(f'ds_read_b128 {A(aZ+4*k,4)}, v17 offset:{1024*k}')
    acc = lambda cs, ri, hi: va + ((cs*2+ri)*2+hi)*4
    for cs in range(2):
        for jj in range(4):
            for ri in range(2):
                d = V(acc(cs, ri, jj >> 1), 4)
                p(f'{M16} {d}, {A(aZ+(cs*4+jj)*4,4)}, {V(vIV+((cs*2+ri)*2+(jj&1))*4,4)}, {d if jj&1 else 0}')
    p(f'''v_and_b32 v{t}, 1, v1
    v_lshlrev_b32 v{t}, 31, v{t}
    v_or_b32 v{t}, 1.0, v{t}
    s_lshl_b32 s52, s{sW}, 8
    s_add_u32 s52, s52, s{sHC2}
    s_lshl_b32 s52, s52, 4
    s_add_u32 s52, s52, s{sCP}
    s_lshl_b32 s52, s52, 7
    s_add_u32 s64, s52, {Y_OFF}
    v_lshlrev_b32 v{t+2}, 15, v1
    v_lshl_add_u32 v{t+2}, v2, 4, v{t+2}''')
    for cs in range(2):
        for ri in range(2):
            for k in (0, 2):
                p(f'v_pk_fma_f32 {V(acc(cs,ri,0)+k,2)}, {V(acc(cs,ri,1)+k,2)}, {V(t,2)}, {V(acc(cs,ri,0)+k,2)} op_sel_hi:[1,0,1]')
    vr, vi, wr, wi = acc(0,0,0), acc(0,1,0), acc(1,0,0), acc(1,1,0)
    p(f's_cmp_eq_u32 s{sCP}, 0\ns_cbranch_scc1 {lab}')
    tt = va + 4
    for k in (0, 2):
        p(f'''v_pk_add_f32 {V(tt+k,2)}, {V(vi+k,2)}, {V(wi+k,2)} neg_lo:[0,1] neg_hi:[0,1]
        v_pk_add_f32 {V(vi+k,2)}, {V(vi+k,2)}, {V(wi+k,2)}
        v_pk_add_f32 {V(wi+k,2)}, {V(wr+k,2)}, {V(vr+k,2)} neg_lo:[0,1] neg_hi:[0,1]
        v_pk_add_f32 {V(vr+k,2)}, {V(vr+k,2)}, {V(wr+k,2)}
        v_mov_b32 v{wr+k}, v{tt+k}
        v_mov_b32 v{wr+k+1}, v{tt+k+1}''')
    p(f'{lab}:')
    for rho, (u, v) in enumerate(((vr, vi), (wr, wi))):
        o = t + 4 + 4*rho
        p(f'{CVT} v{o}, v{u}, v{u+1}\n{CVT} v{o+1}, v{u+2}, v{u+3}\n{CVT} v{o+2}, v{v}, v{v+1}\n{CVT} v{o+3}, v{v+2}, v{v+3}')
        p(f'buffer_store_dwordx4 {V(o,4)}, v{t+2}, {WS}, s64 offen offset:{64*rho} sc1', 'yst')
    return p
```

```python
from k_common import *
import k_g1 as G1, k_p2 as P2, k_g2 as G2
NAME = 'recurrent_scan__spectral_gfnet__mixer_channel_mlp__prompt_kernel'
ZF, HF, YF = FL_OFF, FL_OFF + 4096, FL_OFF + 8192
vOOB, vPA, vP, vONEI = 5, 6, 7, 8
tail = []
def poll_issue(srd, va, so): return Prog()(f'buffer_load_dword v{vP}, v{va}, {srd}, {so} offen sc1')
def poll_check(name, srd, va, so):
    p = Prog()
    p(f'v_cmp_ne_u32 vcc, 1, v{vP}\ns_cbranch_vccnz SPIN_{name}\nBACK_{name}:')
    tail.append(f'''SPIN_{name}:
    s_mov_b32 s3, 0
LOOP_{name}:
    buffer_load_dword v{vP}, v{va}, {srd}, {so} offen sc1
    s_add_u32 s3, s3, 1
    s_cmp_gt_u32 s3, 20000
    s_cbranch_scc1 BACK_{name}
    s_waitcnt vmcnt(0)
    v_cmp_ne_u32 vcc, 1, v{vP}
    s_cbranch_vccnz LOOP_{name}
    s_branch BACK_{name}
''')
    return p
def flag_store(tag, scalc):
    p = Prog(); p(scalc); p.wvm(tag)
    p(f'buffer_store_dword v{vONEI}, v{vOOB}, {WS}, s56 offen sc1')
    return p
def w2rd(gam):
    L = G2.w2_reads(gam)
    for g in L: g.l[-1].tag = f'w2r{gam}'
    return L
def w2ld(gam):
    L = G2.w2_dma(gam)
    prev = [k for k in range(gam) if G2.SLOT[k] == G2.SLOT[gam]]
    if prev:
        g = Prog(); g.wdsn(f'w2r{prev[-1]}'); L[0] = g.add(L[0])
    return L
def flat(L):
    p = Prog()
    for g in L: p.add(g)
    return p
isvalu = lambda x: x.kind == 'valu'
def kernel(diag, cfg):
    p = Prog(); prologue(p, 'EXIT', diag)
    if cfg.get('pf', '1') == '1':
        p(f'''s_getpc_b64 s[52:53]
        PCREF:
        s_lshl_b32 s54, s{sW}, 13
        v_lshlrev_b32 v230, 7, v0
        v_add_u32 v230, s54, v230
        v_min_u32 v230, CODE_END-PCREF, v230
        v_mov_b32 v231, s53
        v_add_co_u32 v230, vcc, s52, v230
        v_addc_co_u32 v231, vcc, 0, v231, vcc
        global_load_dword v223, v[230:231], off''')
    G1.g1_addr(p)
    for q in range(7): p.add(G1.g1_dma_addr(q))
    p(f'''s_cmp_lg_u32 s2, 0
    s_cbranch_scc1 NOZERO
    v_mov_b32 v224, 0
    v_mov_b32 v225, 0
    v_mov_b32 v226, 0
    v_mov_b32 v227, 0
    s_mul_i32 s52, s{sW}, 3072
    s_add_u32 s52, s52, {FL_OFF}
    v_lshlrev_b32 v228, 4, v0''')
    for k in range(3): p(f'buffer_store_dwordx4 v[224:227], v228, {WS}, s52 offen offset:{1024*k} sc1')
    p('NOZERO:\ns_waitcnt lgkmcnt(0)')
    stamp(p, 'ka')
    xl, wl = G1.g1_xl, G1.g1_wl
    for g in xl(0) + wl(0): p.add(g)
    stamp(p, 'l0')
    p.add(G1.g1_consts())
    stamp(p, 'c0')
    c = G1.d32_consts().add(G2.w2_addr(224)).add(P2.p2_ids())
    c(f's_or_b32 s52, s2, s{sW}\nv_add_u32 v53, s52, v0\nv_lshlrev_b32 v53, 8, v53\nv_mov_b32 v55, 1')
    p.add(c)
    for g in xl(1): p.add(g)
    p.add(P2.p2_fwd_consts())
    stamp(p, 'c1')
    w1, w2, w3 = wl(1), wl(2), wl(3)
    npre = int(cfg.get('npre', 4))
    for g in w1[:npre]: p.add(g)
    stamp(p, 'iss')
    hook = Prog()(f'buffer_store_dword v55, v53, {DBG}, 0 offen sc1')
    go = Prog()(f'v_mov_b32 v{vPA}, 0\nv_mov_b32 v{vONEI}, 1\nv_min_u32 v{vOOB}, 1, v0\nv_lshlrev_b32 v{vOOB}, 28, v{vOOB}').add(poll_issue(DBG, vPA, 0))
    wl2 = P2.p2_wloads()
    sched = {0: w1[npre:] + xl(2), 1: xl(3), 2: w2[:4], 3: w2[4:] + xl(4)[:2], 4: xl(4)[2:] + xl(5), 5: w3[:4], 6: w3[4:] + G1.b1_loads(), 7: xl(6), 8: xl(7) + G2.w2_l2pf(),
             9: w2ld(0) + wl2[:2], 10: w2ld(1) + wl2[2:4], 11: [go] + wl2[4:], 12: w2ld(2) + w2ld(3), 13: w2ld(4) + w2ld(5)[:2], 14: w2ld(5)[2:] + w2ld(6), 15: w2ld(7)}
    xds = {12: w2rd(0), 14: w2rd(1)}
    p.add(G1.g1_main(sched, hook=hook, xds=xds))
    stamp(p, 'g1')
    a, b = G1.g1_stats_z()
    p.add(a).add(b)
    p.add(poll_check('go', DBG, vPA, 0))
    stamp(p, 'z')
    pre, Lg = G1.g1_gelu(); p.add(pre)
    zfl = flag_store('zst', f's_lshl2_add_u32 s56, s{sHC}, s{sW}\ns_lshl4_add_u32 s56, s56, s{sRB}\ns_lshl2_add_u32 s56, s56, {ZF}')
    zpi = Prog()(f's_lshr_b32 s60, s62, 3\ns_lshl2_add_u32 s60, s{sHC2}, s60\ns_lshl_b32 s60, s60, 6\ns_add_u32 s60, s60, {ZF}\nv_lshlrev_b32 v{vPA}, 2, v1').add(poll_issue(WS, vPA, 's60'))
    zn = int(cfg.get('zn', 3))
    fills = {0: w2rd(2) + w2ld(8), 1: w2rd(3) + w2ld(9), 2: w2rd(4) + w2ld(10), 3: w2rd(5) + w2ld(11),
             4: w2rd(6) + w2ld(12), 5: w2rd(7) + w2ld(13), 6: []}
    fills[zn] = [zfl] + fills[zn]
    for n, g in enumerate(Lg):
        f = fills.get(n, [])
        g, rest = weave(g, f, start=0, every=max(1, 48//max(1, len(f))), pred=isvalu); p.add(g).add(rest)
    stamp(p, 'gelu')
    p.add(zpi)
    c, rest = weave(P2.p2_inv_consts().add(G2.h_addr(224)), [g for k in range(8, 14) for g in w2rd(k)], start=30, pred=isvalu)
    p.add(c).add(rest)
    hfl = flag_store('hst', f's_lshl2_add_u32 s56, s{sRB}, s{sW}\ns_lshl4_add_u32 s56, s56, s{sHC}\ns_lshl2_add_u32 s56, s56, {HF}')
    p.add(hfl)
    stamp(p, 'hfl')
    p.add(poll_check('z', WS, vPA, 's60'))
    stamp(p, 'zpoll')
    p.add(P2.p2_zloads())
    gc = G2.g_consts(224); n1 = 9 + 65*int(cfg.get('g1n', 3))
    gc2 = Prog(); gc2.l = gc.l[n1:]; gc.l = gc.l[:n1]
    p.add(gc)
    p('v_mov_b32 v54, v224\nv_mov_b32 v55, v225')
    stamp(p, 'gc')
    p.add(P2.p2_fwd())
    stamp(p, 'fwd')
    p(f's_lshl_b32 s60, s{sBP}, 7\ns_lshl4_add_u32 s60, s{sW}, s60\ns_add_u32 s60, s60, {HF}\nv_and_b32 v{vPA}, 0x13, v0\nv_lshlrev_b32 v{vPA}, 2, v{vPA}')
    p.add(poll_issue(WS, vPA, 's60'))
    p.add(P2.p2_inv('CP0'))
    stamp(p, 'p2')
    p.add(poll_check('h', WS, vPA, 's60'))
    stamp(p, 'hpoll')
    hl = G2.h_loads()
    for g in hl[:10]: p.add(g)
    p('v_mov_b32 v224, v54\nv_mov_b32 v225, v55')
    p.add(gc2).add(G2.h_consts(224)).add(G2.fin_addr(224))
    yfl = flag_store('yst', f's_lshl4_add_u32 s56, s{sW}, s{sHC2}\ns_lshl4_add_u32 s56, s56, s{sCP}\ns_lshl2_add_u32 s56, s56, {YF}')
    p.add(yfl)
    for g in hl[10:14]: p.add(g)
    stamp(p, 'yfl')
    ypi = Prog()(f's_lshr_b32 s60, s{sBP}, 3\ns_lshl2_add_u32 s60, s60, s{sW}\ns_lshl_b32 s60, s60, 8\ns_add_u32 s60, s60, {YF}\nv_lshlrev_b32 v{vPA}, 2, v0').add(poll_issue(WS, vPA, 's60'))
    yl = G2.y_loads(); yl[0] = poll_check('y', WS, vPA, 's60').add(yl[0])
    hl[42] = hl[42].add(ypi)
    for k, g in enumerate(G2.fin_loads()): hl[20+4*k].add(g)
    m, rest = weave(G2.g2_mfmas(), hl[14:] + yl, every=2, pred=ismfma)
    p.add(m).add(rest)
    stamp(p, 'g2')
    yr = G2.y_reads(); gw = G2.g_part_writes()
    for g in yr[:4] + gw[:4]: p.add(g)
    rm = G2.r_mfmas()
    r1 = Prog(); r1.l = rm.l[:24]; r2 = Prog(); r2.l = rm.l[24:]
    f1 = [G2.fin_xread()] + yr[4:8] + gw[4:] + yr[8:]
    r1, rest = weave(r1, f1, pred=ismfma); p.add(r1).add(rest)
    p.wds(); p('s_barrier')
    rd, f = G2.silu_part()
    f2 = Prog().add(rd)
    fa = Prog(); fa.l = f.l[:40]; fb = Prog(); fb.l = f.l[40:]
    f2.add(fa)
    for k in range(4): f2.add(G2.r_pack(k))
    f2.add(fb)
    r2, rest = weave(r2, f2, per=2, pred=ismfma); p.add(r2)
    stamp(p, 'r')
    for k in range(4, 8): p.add(G2.r_pack(k))
    p.add(rest)
    p.add(G2.finish(cfg.get('sc', 'sc1')))
    stamp(p, 'fin')
    if diag:
        p('s_waitcnt vmcnt(0)'); stamp(p, 'end')
        if 'leak' in cfg:
            i = int(cfg['leak'])
            p(f'''s_waitcnt lgkmcnt(0)
            s_add_u32 s52, s{86+2*i}, 4000
            s_mov_b32 s3, 0
            LEAK:
            s_memrealtime s[54:55]
            s_add_u32 s3, s3, 1
            s_cmp_gt_u32 s3, 100000
            s_cbranch_scc1 EXIT
            s_waitcnt lgkmcnt(0)
            s_sub_u32 s54, s54, s52
            s_cmp_lt_i32 s54, 0
            s_cbranch_scc1 LEAK''')
        else: stamp_out(p, 0, 'EXIT')
    p('EXIT:'); return p
if __name__ == '__main__':
    diag = 'diag' in sys.argv[2:]
    cfg = dict(a.split('=') for a in sys.argv[2:] if '=' in a)
    st = {}
    if diag: STAMPS.extend(cfg.get('st', 'iss,g1,z,gelu,p2,g2,end').split(','))
    body = finalize(kernel(diag, cfg), st) + '    s_endpgm\n' + ''.join(tail) + 'CODE_END:\n'; print(st)
    if 'cyc' in sys.argv[1]: body = body.replace('s_memrealtime', 's_memtime')
    open(sys.argv[1], 'w').write(build_file([dict(name=NAME, grid=256, block=256, lds=163840, body=body, nfv=512, accum=256)], single=True))
```

```python
from k_common import *
vDMA, vT, vF, vONE, vD32, vXO, vXR, vB1, vSG, vHID, vXF, vTMP = 5, 12, 16, 20, 24, 40, 44, 46, 48, 56, 112, 192
aX, aFR, aCS, aSUM, aSQ = 96, 128, 200, 228, 236
def g1_addr(p):
    p(f'''s_add_u32 s52, s{sRB}, s{sHC}
    s_and_b32 s52, s52, 3
    s_lshl2_add_u32 s53, s52, s{sW}
    s_lshl_b32 s{sXOR}, s53, 6
    s_lshl2_add_u32 s54, s{sRB}, s{sW}
    s_lshl_b32 s54, s54, 10
    s_and_b32 s55, s{sW}, 1
    s_lshl_b32 s55, s55, 2
    v_and_b32 v{vTMP}, 7, v0
    v_xor_b32 v{vTMP}, v{vTMP}, v2
    v_xor_b32 v{vTMP}, s55, v{vTMP}
    v_lshrrev_b32 v{vXO}, 3, v0
    v_lshlrev_b32 v{vXO}, 16, v{vXO}
    v_lshl_add_u32 v{vXO}, v{vTMP}, 4, v{vXO}
    v_add_u32 v{vXO}, s54, v{vXO}
    v_xor_b32 v{vXO+1}, 64, v{vXO}
    v_add_u32 v{vXO+2}, {16*65536-2048}, v{vXO}
    v_add_u32 v{vXO+3}, {24*65536-3072}, v{vXO+1}
    v_add_u32 v{vXO+1}, {8*65536-1024}, v{vXO+1}
    s_and_b32 s59, s{sXOR}, 0x380
    s_mul_i32 s55, s{sHC}, 224''')
    for m in range(4):
        p(f's_xor_b32 s52, s53, {4*m}\ns_mul_i32 s52, s52, 114688\ns_add_u32 s{82+m}, s52, s55')
def g1_dma_addr(q):
    p = Prog(); t = vTMP; d = vDMA + q
    p(f'''v_add_u32 v{t}, {64*q}, v0
    v_mul_u32_u24 v{t+1}, 4682, v{t}
    v_lshrrev_b32 v{t+1}, 16, v{t+1}
    v_mul_u32_u24 v{t+2}, 14, v{t+1}
    v_sub_u32 v{t}, v{t}, v{t+2}
    v_lshrrev_b32 v{t+2}, 1, v{t+1}
    v_xor_b32 v{t+2}, v{t+2}, v{t+1}
    v_and_b32 v{t+2}, 4, v{t+2}
    v_mul_u32_u24 v{t+2}, 3, v{t+2}
    v_xor_b32 v{t+1}, v{t+2}, v{t+1}
    v_mul_u32_u24 v{t+1}, 3584, v{t+1}
    v_lshl_add_u32 v{d}, v{t}, 4, v{t+1}''')
    if q & 3: p(f'v_subrev_u32 v{d}, {(q&3)*1024}, v{d}')
    return p
def g1_wl(m):
    L = []
    for q in range(7):
        g = Prog()
        if q in (0, 4): g(f's_add_u32 m0, s{sLB}, {W1OFF[m%3] + (q>>2)*4096}')
        g(f'buffer_load_dwordx4 v{vDMA+q}, {W1}, s{82+m} offen offset:{(q&3)*1024} lds', f'dma{m}')
        L.append(g)
    return L
def g1_xl(u):
    L = []
    for q in range(4):
        g = Prog()
        if q == 0: g(f's_add_u32 m0, s{sLB}, {XSOFF[u%3]}\ns_xor_b32 s57, s59, {u*128}')
        g(f'buffer_load_dwordx4 v{vXO+q}, {X}, s57 offen offset:{q*1024} lds', f'xd{u}')
        L.append(g)
    return L
def g1_consts():
    p = Prog(); t = vTMP
    p(f'''v_lshrrev_b32 v{t}, 1, v2
    v_and_b32 v{t+1}, 1, v2
    v_lshlrev_b32 v{t}, 4, v{t}
    v_lshl_add_u32 v{t}, v{t+1}, 2, v{t}
    v_lshrrev_b32 v{t+1}, 2, v1
    v_add_u32 v{t}, v{t}, v{t+1}
    v_mul_u32_u24 v{t}, 224, v{t}
    v_and_b32 v{t+1}, 3, v1
    v_lshl_add_u32 v{t}, v{t+1}, 3, v{t}
    v_lshlrev_b32 v{t+2}, 4, v0
    v_cmp_eq_u32 s[76:77], 1, v{t+1}
    v_cmp_eq_u32 s[78:79], 2, v{t+1}
    v_cmp_eq_u32 s[80:81], 3, v{t+1}''')
    for i in range(4):
        p(f'''s_xor_b32 s52, s{sW}, {i}
        s_mul_i32 s53, s52, {WST}
        s_lshl_b32 s52, s52, 11
        s_add_u32 s52, s52, {L_F}
        v_add_u32 v{vT+i}, s53, v{t}
        v_add_u32 v{vF+i}, s52, v{t+2}
        v_mov_b32 v{vONE+i}, 0x3f803f80''')
    p(f'''v_lshrrev_b32 v{t+3}, 1, v1
    v_xor_b32 v{t+3}, v{t+3}, v2
    v_lshlrev_b32 v{t+3}, 4, v{t+3}
    v_lshl_add_u32 v{t+3}, v1, 7, v{t+3}
    v_add_u32 v{vXR}, s{sLB}, v{t+3}
    v_xor_b32 v{vXR+1}, 64, v{vXR}
    v_and_b32 v{vSG}, 1, v1
    v_lshlrev_b32 v{vSG}, 31, v{vSG}
    v_xor_b32 v{vSG}, -1.0, v{vSG}''')
    k2f, g8, ang, c, s = t, t+1, t+2, t+4, t+12
    p(f'''s_lshl_b32 s52, s{sHC}, 4
    s_add_u32 s52, s52, 1
    v_add_u32 v{k2f}, s52, v1
    v_cvt_f32_u32 v{k2f}, v{k2f}
    v_mul_f32 v{k2f}, {fx(1/512)}, v{k2f}
    v_lshlrev_b32 v{g8}, 3, v2''')
    for m in range(2):
        p(f'''s_xor_b32 s52, s{sXOR}, {m*256}
        s_lshr_b32 s52, s52, 1
        v_add_u32 v{ang}, s52, v{g8}
        v_cvt_f32_u32 v{ang}, v{ang}
        v_mul_f32 v{ang}, v{ang}, v{k2f}''')
        for j in range(8):
            p(f'v_cos_f32 v{c+j}, v{ang}\nv_sin_f32 v{s+j}, v{ang}')
            if j < 7: p(f'v_add_f32 v{ang}, v{ang}, v{k2f}')
        for j in range(4):
            p(f'{CVT} v{t+20+j}, v{c+2*j}, v{c+2*j+1}\n{CVT} v{t+24+j}, -v{s+2*j}, -v{s+2*j+1}')
        p(f'ds_write_b128 v{vF}, {V(t+20,4)} offset:{m*8192}\nds_write_b128 v{vF}, {V(t+24,4)} offset:{m*8192+1024}')
    return p
def d32_consts():
    p = Prog(); t = vTMP
    lf, ang, c, s = t, t+1, t+4, t+12
    p(f'''v_cvt_f32_u32 v{lf}, v1
    v_cvt_f32_u32 v{ang}, v2
    v_mul_f32 v{lf}, {fx(1/32)}, v{lf}
    v_mul_f32 v{ang}, 4.0, v{ang}
    v_mul_f32 v{ang}, v{ang}, v{lf}''')
    for j in range(8):
        p(f'v_cos_f32 v{c+j}, v{ang}\nv_sin_f32 v{s+j}, v{ang}')
        if j == 3: p(f'v_fmamk_f32 v{ang}, v{lf}, {fx(13.0)}, v{ang}')
        elif j < 7: p(f'v_add_f32 v{ang}, v{ang}, v{lf}')
    for j in range(4):
        p(f'''{CVT} v{vD32+j}, v{c+2*j}, v{c+2*j+1}
        {CVT} v{vD32+4+j}, v{s+2*j}, v{s+2*j+1}
        {CVT} v{vD32+8+j}, v{c+2*j}, -v{c+2*j+1}
        {CVT} v{vD32+12+j}, v{s+2*j}, -v{s+2*j+1}''')
    return p
def b1_loads():
    g = Prog()
    g(f's_mul_i32 s58, s{sHC}, 224\nv_lshlrev_b32 v54, 3, v0\nbuffer_load_dwordx2 {V(vB1,2)}, v54, {B1}, s58 offen')
    return [g]
def g1_reads(st):
    m, i = st >> 2, st & 3; fb = aFR + (st & 1)*36; u = st >> 1
    L = []
    if not st & 1:
        for ii in range(2):
            for tt in range(2):
                L.append(Prog()(f'ds_read_b128 {A(aX+((u&1)*4+ii*2+tt)*4,4)}, v{vXR+ii} offset:{XSOFF[u%3]+tt*2048}'))
    for n in range(7):
        for hh in range(2):
            L.append(Prog()(f'ds_read_b64_tr_b16 {A(fb+4*n+2*hh,2)}, v{vT+i} offset:{W1OFF[m%3] + hh*1792 + n*32}'))
    for t in range(2):
        L.append(Prog()(f'ds_read_b128 {A(fb+28+4*t,4)}, v{vF+i} offset:{(m&1)*8192 + t*1024}'))
    return L
def g1_mfmas(st):
    m, i = st >> 2, st & 3; fb = aFR + (st & 1)*36
    p = Prog()
    xf = lambda tt: A(aX + ((st&3)*2+tt)*4, 4)
    c = lambda r: r if st else '0'
    for tt in range(2):
        p(f'{M16} {A(aSUM+4*tt,4)}, {V(vONE,4)}, {xf(tt)}, {c(A(aSUM+4*tt,4))}')
        p(f'{M16} {A(aSQ+4*tt,4)}, {xf(tt)}, {xf(tt)}, {c(A(aSQ+4*tt,4))}')
    for n in range(7):
        for tt in range(2):
            d = V(vHID + (2*n+tt)*4, 4)
            p(f'{M16} {d}, {A(fb+4*n,4)}, {xf(tt)}, {c(d)}')
        if i == 0: p(f'{M16} {A(aCS+4*n,4)}, {V(vONE,4)}, {A(fb+4*n,4)}, {c(A(aCS+4*n,4))}')
    for t in range(2):
        for tt in range(2):
            d = V(vXF + (2*t+tt)*4, 4)
            p(f'{M16} {d}, {xf(tt)}, {A(fb+28+4*t,4)}, {c(d)}')
    return p
def g1_main(sched, hook=None, lstart=4, levery=4, fill=None, xds={}):
    p = Prog(); t = vTMP + 24
    p.wvm('xd0'); p.wvm('dma0'); p.wds()
    stamp(p, 'd0')
    for g in g1_reads(0): p.add(g)
    for st in range(16):
        mf = g1_mfmas(st)
        stamp(p, f's{st}')
        pre = Prog(); pre.wds()
        if st < 15:
            rd = g1_reads(st+1)
            if (st & 3) == 3: pre.wvm(f'dma{(st+1)>>2}')
            if st & 1: pre.wvm(f'xd{(st+1)>>1}')
            if (st & 3) == 0 or st == 14:
                pre('s_barrier')
                if hook and st == 0: pre.add(hook)
            rd[0] = pre.add(rd[0])
            if len(rd) > 16: rd = [rd[0].add(rd[1]), rd[2].add(rd[3])] + rd[4:]
            mf, rest = weave(mf, rd, start=2, pred=ismfma); assert not rest.l
        ex = Prog()
        if st == 8:
            for k in range(16): ex(f'v_mul_f32 v{vXF+k}, v{vSG}, v{vXF+k}')
        if st == 13:
            ex(f's_lshl_b32 s52, s{sW}, 9\ns_add_u32 s52, s52, {L_CS}\nv_lshlrev_b32 v55, 2, v1\nv_add_u32 v55, s52, v55')
            for n in range(7): ex(f'ds_write_b32 v55, a{aCS+4*n} offset:{64*n}')
        if st == 14:
            ex(f'v_and_b32 v55, 31, v0\nv_lshlrev_b32 v55, 4, v55\nv_add_u32 v55, {L_CS}, v55')
            for k in range(4): ex(f'ds_read_b128 {V(vTMP+4*k,4)}, v55 offset:{512*k}')
            for k in range(2): ex(f'v_lshlrev_b32 v{vTMP+16+2*k}, 16, v{vB1+k}\nv_and_b32 v{vTMP+17+2*k}, 0xffff0000, v{vB1+k}')
        if st == 15:
            for k in range(4): ex(f'v_add_f32 v{vTMP+k}, v{vTMP+k}, v{vTMP+4+k}\nv_add_f32 v{vTMP+8+k}, v{vTMP+8+k}, v{vTMP+12+k}')
            for k in range(4): ex(f'v_add_f32 v{vTMP+k}, v{vTMP+k}, v{vTMP+8+k}')
            ex(f'v_lshlrev_b32 v54, 4, v0\nv_add_u32 v54, {L_CS+2560}, v54')
            ex(f'ds_write_b128 v55, {V(vTMP,4)} offset:2048\nds_write_b128 v54, {V(vTMP+16,4)}')
        for g in xds.get(st, []): ex.add(g)
        if fill is not None and not ex.l: mf, fill = weave(mf, fill, pred=ismfma)
        mf, rest = weave(mf, ex, start=3 if st < 15 else 0, pred=ismfma); mf.add(rest)
        ld = sched.get(st, []); ev = levery if len(ld) <= 4 else max(1, 18//len(ld))
        mf, rest = weave(mf, ld, start=lstart, every=ev, pred=ismfma); mf.add(rest)
        p.add(mf)
    assert fill is None or not fill.l, len(fill.l)
    return p
vRS, vNM = 12, 14
def g1_stats_z():
    p = Prog(); t = vTMP
    p(f'''v_lshrrev_b32 v{t}, 2, v1
    v_lshl_add_u32 v{t}, v{t}, 4, v1
    v_lshlrev_b32 v{t}, 2, v{t}
    v_lshlrev_b32 v{t+1}, 4, v2''')
    for tt in range(2):
        q = t+4+4*tt
        for r in range(4): p(f'v_accvgpr_read_b32 v{q+r}, a{aSQ+4*tt+r}')
        p(f'''v_cndmask_b32 v{q}, v{q}, v{q+1}, s[76:77]
        v_cndmask_b32 v{q}, v{q}, v{q+2}, s[78:79]
        v_cndmask_b32 v{q}, v{q}, v{q+3}, s[80:81]
        ds_bpermute_b32 v{q}, v{t}, v{q}
        v_accvgpr_read_b32 v{q+1}, a{aSUM+4*tt}
        v_mul_f32 v{q+1}, {fx(1/512)}, v{q+1}
        v_mul_f32 v{q+2}, v{q+1}, v{q+1}''')
    p(f'''s_cmp_eq_u32 s{sHC}, 15
    s_cselect_b32 s52, 15, 16
    v_cmp_eq_u32 vcc, s52, v1
    v_mov_b32 v{t+2}, {fx(2.0**-19)}
    v_mov_b32 v{t+3}, {fx(2.0**-20)}
    v_cndmask_b32 v{t+2}, v{t+2}, v{t+3}, vcc
    v_mul_f32 v{t+2}, v{t+2}, v{vSG}''')
    for tt in range(2):
        q = t+4+4*tt
        p(f'''v_mul_f32 v{q}, {fx(1/512)}, v{q}
        v_sub_f32 v{q}, v{q}, v{q+2}
        v_max_f32 v{q}, 0, v{q}
        v_add_f32 v{q+2}, {fx(1e-5)}, v{q}
        v_rsq_f32 v{q+2}, v{q+2}''')
        for r in range(4): p(f'ds_bpermute_b32 v{t+12+4*tt+r}, v{t+1}, v{q+2} offset:{4*r}')
    for tt in range(2):
        q = t+4+4*tt
        p(f'''v_mul_f32 v{q}, v{q}, v{q+2}
        v_fmaak_f32 v{q}, v{q}, v{q+2}, {fx(1e-5)}
        v_rsq_f32 v{q}, v{q}
        v_mul_f32 v{vRS+tt}, v{q}, v{q+2}
        v_mul_f32 v{vNM+tt}, v{vRS+tt}, -v{q+1}''')
    for k in range(0, 8, 2):
        p(f'v_pk_mul_f32 {V(t+12+k,2)}, {V(t+12+k,2)}, {V(t+2,2)} op_sel_hi:[1,0]')
    for tq in range(2):
        for k in range(0, 8, 2):
            p(f'v_pk_mul_f32 {V(vXF+8*tq+k,2)}, {V(vXF+8*tq+k,2)}, {V(t+12+k,2)}')
    br, bi, bn = t, t+4, t+8
    for k in range(4):
        p(f'''{CVT} v{br+k}, v{vXF+2*k}, v{vXF+2*k+1}
        {CVT} v{bi+k}, v{vXF+8+2*k}, v{vXF+8+2*k+1}
        {CVT} v{bn+k}, -v{vXF+2*k}, -v{vXF+2*k+1}''')
    z = vXF
    for ct in range(2):
        p(f'{M16} {V(z+8*ct,4)}, {V(vD32+8*ct,4)}, {V(br,4)}, 0\n{M16} {V(z+8*ct+4,4)}, {V(vD32+8*ct,4)}, {V(bi,4)}, 0')
    for ct in range(2):
        p(f'{M16} {V(z+8*ct,4)}, {V(vD32+8*ct+4,4)}, {V(bi,4)}, {V(z+8*ct,4)}\n{M16} {V(z+8*ct+4,4)}, {V(vD32+8*ct+4,4)}, {V(bn,4)}, {V(z+8*ct+4,4)}')
    p(f'''s_lshl2_add_u32 s52, s{sW}, {L_ZT}
    v_lshlrev_b32 v{t+12}, 10, v2
    v_lshl_add_u32 v{t+12}, v1, 4, v{t+12}
    v_add_u32 v{t+12}, s52, v{t+12}
    s_lshl_b32 s52, s{sW}, 11
    s_add_u32 s52, s52, {L_ZT}
    v_lshlrev_b32 v{t+13}, 4, v0
    v_add_u32 v{t+13}, s52, v{t+13}''')
    for ct in range(2):
        for r in range(4):
            p(f'{CVT} v{t+4*ct+r}, v{z+8*ct+r}, v{z+8*ct+4+r}\nds_write_b32 v{t+12}, v{t+4*ct+r} offset:{ct*4096+r*256}')
    p.wds(); p('s_barrier')
    q = Prog()
    q(f'ds_read_b128 {V(t,4)}, v{t+13}\nds_read_b128 {V(t+4,4)}, v{t+13} offset:1024')
    q(f'buffer_store_dwordx4 {V(t,4)}, v221, {WS}, 0 offen sc1\nbuffer_store_dwordx4 {V(t+4,4)}, v222, {WS}, 0 offen sc1', 'zst')
    return p, q
def z_poison():
    pre = Prog()
    pre(f'''s_lshl2_add_u32 s52, s{sHC}, s{sW}
    s_lshl_b32 s52, s52, 7
    s_add_u32 s52, s52, s{sRB}
    s_lshl_b32 s52, s52, 8
    s_add_u32 s52, s52, {Z_OFF}
    v_lshlrev_b32 v221, 12, v2
    v_lshl_add_u32 v221, v1, 4, v221
    v_add_u32 v221, s52, v221
    v_add_u32 v222, 16384, v221''')
    for k in range(4): pre(f'v_mov_b32 v{224+k}, -1')
    L = []
    for k in range(2): L.append(Prog()(f'buffer_store_dwordx4 v[224:227], v{221+k}, {WS}, 0 offen sc1', 'zpo'))
    return pre, L
def g1_gelu():
    K0 = -2*math.log2(math.e)*math.sqrt(2/math.pi); K1 = K0*0.044715
    t = 112
    pre = Prog()
    pre(f'''s_mov_b32 s74, {fx(K1)}
    v_mov_b32 v16, {fx(K0)}
    v_lshlrev_b32 v17, 4, v2
    v_add_u32 v17, {L_CS+2048}, v17
    v_lshlrev_b32 v18, 4, v0
    s_lshl2_add_u32 s52, s{sRB}, s{sW}
    s_mul_i32 s52, s52, 112
    s_mul_i32 s53, s{sHC}, 7
    s_add_u32 s52, s52, s53
    s_lshl_b32 s75, s52, 10
    s_add_u32 s57, s75, 4096
    ds_read_b128 {V(t,4)}, v17
    ds_read_b128 {V(t+8,4)}, v17 offset:512''')
    L = []
    for n in range(7):
        p = Prog(); cs = t + 4*(n & 1); bu = cs+8; u = 232; e = 236
        if n < 6: p(f'ds_read_b128 {V(t+4*((n+1)&1),4)}, v17 offset:{64*(n+1)}\nds_read_b128 {V(t+8+4*((n+1)&1),4)}, v17 offset:{512+64*(n+1)}')
        U, E = (232, 224), (236, 228); hh = vHID + 8*n
        T2 = [(tt, k) for tt in range(2) for k in (0, 2)]; T4 = [(tt, k) for tt in range(2) for k in range(4)]
        sel = ['op_sel_hi:[1,0,1]', 'op_sel:[0,1,0] op_sel_hi:[1,1,1]']
        for tt, k in T2: p(f'v_pk_fma_f32 {V(U[tt]+k,2)}, {V(cs+k,2)}, {V(vNM,2)}, {V(bu+k,2)} {sel[tt]}')
        for tt, k in T2: p(f'v_pk_fma_f32 {V(U[tt]+k,2)}, {V(hh+4*tt+k,2)}, {V(vRS,2)}, {V(U[tt]+k,2)} {sel[tt]}')
        for tt, k in T2: p(f'v_pk_mul_f32 {V(E[tt]+k,2)}, {V(U[tt]+k,2)}, {V(U[tt]+k,2)}')
        for tt, k in T2: p(f'v_pk_fma_f32 {V(E[tt]+k,2)}, {V(E[tt]+k,2)}, s[74:75], v[16:17] op_sel_hi:[1,0,0]')
        for tt, k in T2: p(f'v_pk_mul_f32 {V(E[tt]+k,2)}, {V(E[tt]+k,2)}, {V(U[tt]+k,2)}')
        for tt, k in T4: p(f'v_exp_f32 v{E[tt]+k}, v{E[tt]+k}')
        for tt, k in T2: p(f'v_pk_add_f32 {V(E[tt]+k,2)}, {V(E[tt]+k,2)}, 1.0 op_sel_hi:[1,0]')
        for tt, k in T4: p(f'v_rcp_f32 v{E[tt]+k}, v{E[tt]+k}')
        for tt, k in T2: p(f'v_pk_mul_f32 {V(U[tt]+k,2)}, {V(U[tt]+k,2)}, {V(E[tt]+k,2)}')
        for tt, k in T2: p(f'{CVT} v{hh+2*tt+k//2}, v{U[tt]+k}, v{U[tt]+k+1}')
        hh = vHID + 8*n
        p(f'v_permlane16_swap_b32 v{hh}, v{hh+2}\nv_permlane16_swap_b32 v{hh+1}, v{hh+3}')
        p(f'buffer_store_dwordx4 {V(hh,4)}, v18, {WS}, s{75 if n < 4 else 57} offen offset:{(n&3)*1024} sc1', 'hst')
        L.append(p)
    return pre, L
```

```python
from k_common import *
vACC, vG, vRING, vHC = 120, 56, 184, 40
vW2O, vW2R, vHO = 49, 3, 10
SLOT = [0, 1, 2, 3, 4, 5, 6, 7, 0, 1, 2, 3, 4, 5]
sROT = 65
def grp_soff(p, gam, dst, mul16):
    p(f's_add_u32 s{dst}, s{sROT}, {gam*2048}\ns_cmp_ge_u32 s{dst}, 28672\ns_cselect_b32 s53, 28672, 0\ns_sub_u32 s{dst}, s{dst}, s53')
    if mul16: p(f's_lshl_b32 s{dst}, s{dst}, 4')
import os
ROTX = {'0': f's_lshl1_add_u32 s52, s52, s{sCB}', '1': 's_lshl_b32 s52, s52, 1', '2': f's_xor_b32 s53, s{sCB}, 5\ns_lshl1_add_u32 s52, s52, s53'}[os.environ.get('ROT', '0')]
def w2_addr(t):
    p = Prog()
    p(f'''s_and_b32 s52, s{sBP}, 3
    {ROTX}
    s_cmp_ge_u32 s52, 7
    s_cselect_b32 s53, 7, 0
    s_sub_u32 s52, s52, s53
    s_lshl_b32 s{sROT}, s52, 12
    s_mul_i32 s52, s{sW}, {448*1024}
    s_lshl_b32 s53, s{sCB}, 7
    s_add_u32 s52, s52, s53
    v_lshrrev_b32 v{t}, 3, v0
    v_and_b32 v{t+1}, 7, v0
    v_and_b32 v{t+2}, 1, v2
    v_lshlrev_b32 v{t+2}, 2, v{t+2}
    v_xor_b32 v{t+1}, v{t+1}, v{t+2}
    v_lshlrev_b32 v{t}, 10, v{t}
    v_lshl_add_u32 v{t}, v{t+1}, 4, v{t}
    v_add_u32 v{vW2O}, s52, v{t}''')
    for q in range(1, 4): p(f'v_add_u32 v{vW2O+q}, {q*7168}, v{vW2O}')
    p(f'''v_lshrrev_b32 v{t}, 2, v1
    v_lshrrev_b32 v{t+1}, 1, v2
    v_lshl_add_u32 v{t+1}, v{t+1}, 3, v{t}
    v_lshlrev_b32 v{t+1}, 7, v{t+1}
    v_lshrrev_b32 v{t}, 1, v{t}
    s_and_b32 s52, s{sW}, 1
    v_xor_b32 v{t}, s52, v{t}
    v_lshl_add_u32 v{t+1}, v{t}, 6, v{t+1}
    v_and_b32 v{t}, 1, v1
    v_lshl_add_u32 v{t+1}, v{t}, 5, v{t+1}
    v_lshl_add_u32 v{t+1}, v{t+2}, 2, v{t+1}
    v_and_b32 v{t}, 2, v1
    v_lshl_add_u32 v{t+1}, v{t}, 2, v{t+1}
    v_add_u32 v{vW2R}, s{sLB}, v{t+1}
    v_xor_b32 v{vW2R+1}, 64, v{vW2R}''')
    return p
def h_addr(t):
    p = Prog()
    p(f'''s_lshr_b32 s52, s{sW}, 1
    s_lshl1_add_u32 s52, s{sBP}, s52
    s_xor_b32 s53, s52, 1
    s_mul_i32 s54, s{sW}, 28672
    s_mul_i32 s52, s52, 114688
    s_mul_i32 s53, s53, 114688
    s_add_u32 s52, s52, s54
    s_add_u32 s53, s53, s54
    v_lshlrev_b32 v{t}, 4, v0
    v_add_u32 v{vHO}, s52, v{t}
    v_add_u32 v{vHO+1}, s53, v{t}''')
    return p
def w2_dma(gam):
    L = []
    for q in range(4):
        g = Prog()
        if q == 0:
            grp_soff(g, gam, 67, True)
            g(f's_add_u32 m0, s{sLB}, {SLOT[gam]*4096}')
        g(f'buffer_load_dwordx4 v{vW2O+q}, {W2}, s67 offen offset:{q*1024} lds', f'w2d{gam}')
        L.append(g)
    return L
def w2_reads(gam):
    L = []
    for u in range(2):
        for ds in range(2):
            for hh in range(2):
                g = Prog()
                if not L: g.wvm(f'w2d{gam}')
                g(f'ds_read_b64_tr_b16 {A(((2*gam+u)*2+ds)*4+2*hh,2)}, v{vW2R+ds} offset:{SLOT[gam]*4096+u*2048+hh*512}')
                L.append(g)
    return L
NR = 16
ORD = [(k >> 1, k & 1) for k in range(48)] + [(t, 1) for t in range(24, 28)] + [(t, 0) for t in range(24, 28)]
def ring(k): return V(vRING + 4*((k + 10) % NR), 4)
def h_loads():
    L = []; seen = set()
    for k, (t, bs) in enumerate(ORD):
        gam, u = t >> 1, t & 1; so = 73 if gam & 1 else 68
        g = Prog()
        if gam not in seen: grp_soff(g, gam, so, False); seen.add(gam)
        g(f'buffer_load_dwordx4 {ring(k)}, v{vHO+bs}, {WS}, s{so} offen offset:{u*1024} sc1')
        L.append(g)
    return L
def b2_load():
    g = Prog()
    g(f'''s_lshr_b32 s52, s{sW}, 1
    s_lshl1_add_u32 s52, s{sBP}, s52
    s_lshl_b32 s52, s52, 10
    s_and_b32 s72, s{sW}, 1
    s_lshl1_add_u32 s72, s{sCB}, s72
    s_lshl_b32 s72, s72, 6
    s_add_u32 s71, s52, s72
    v_and_b32 v19, 3, v0
    v_bfe_u32 v9, v0, 3, 2
    v_lshl_add_u32 v19, v9, 2, v19
    v_and_b32 v9, 4, v0
    v_lshl_add_u32 v19, v9, 2, v19
    v_and_b32 v9, 32, v0
    v_lshl_add_u32 v19, v9, 5, v19
    v_lshlrev_b32 v19, 1, v19
    buffer_load_ushort v19, v19, {B2}, s72 offen''')
    return g
def b2_init():
    p = Prog()
    p('v_mov_b32 v248, v19\nv_mov_b32 v252, 0x3f80')
    for k in (249, 250, 251, 253, 254, 255): p(f'v_mov_b32 v{k}, 0')
    return p
def g2_mfmas():
    p = Prog()
    p(f'{M32} {V(vACC,16)}, v[248:251], v[252:255], 0')
    for k, (t, bs) in enumerate(ORD):
        for ds in ((1, 0) if k == 0 else (0, 1)):
            d = V(vACC + (2*bs+ds)*16, 16)
            p(f'{M32} {d}, {A((t*2+ds)*4,4)}, {ring(k)}, {d if t or bs+ds == 0 else 0}')
    return p
def g_consts(t):
    p = Prog()
    df, kf, ang, c, s = 20, 21, 22, 120, 124
    p(f'''s_lshl_b32 s54, s{sW}, 6
    s_add_u32 s54, s54, 1
    v_lshlrev_b32 v{kf}, 2, v2
    v_add_u32 v{kf}, s54, v{kf}
    v_cvt_f32_u32 v{kf}, v{kf}
    s_lshl_b32 s54, s{sCB}, 6
    v_add_u32 v{df}, s54, v1
    v_cvt_f32_u32 v{df}, v{df}
    v_mul_f32 v{df}, {fx(1/512)}, v{df}''')
    for dq in range(4):
        p(f'v_mul_f32 v{ang}, v{df}, v{kf}')
        for hq in range(4):
            for i in range(4):
                p(f'v_cos_f32 v{c+i}, v{ang}\nv_sin_f32 v{s+i}, v{ang}')
                if i < 3: p(f'v_add_f32 v{ang}, v{ang}, v{df}')
                elif hq < 3: p(f'v_fmamk_f32 v{ang}, v{df}, {fx(13.0)}, v{ang}')
                elif dq < 3: p(f'v_add_f32 v{df}, {fx(1/32)}, v{df}')
            o = vG + (hq*4+dq)*4
            p(f'{CVT} v{o}, v{c}, v{c+1}\n{CVT} v{o+1}, v{c+2}, v{c+3}\n{CVT} v{o+2}, -v{s}, -v{s+1}\n{CVT} v{o+3}, -v{s+2}, -v{s+3}')
    return p
def h_consts(t):
    p = Prog()
    af, ang, c, s = t, t+1, t+2, t+3
    p(f'''v_and_b32 v{af}, 31, v0
    v_cvt_f32_u32 v{af}, v{af}
    v_lshrrev_b32 v{ang}, 5, v0
    v_cvt_f32_u32 v{ang}, v{ang}
    v_mul_f32 v{af}, {fx(1/32)}, v{af}
    v_add_f32 v{ang}, v{ang}, v{ang}
    v_mul_f32 v{ang}, v{ang}, v{af}''')
    for kk in range(2):
        for tq in range(4):
            pp = 8*(tq >> 1) + 4*kk + (tq & 1)
            if pp: p(f'v_fmamk_f32 v{c}, v{af}, {fx(float(pp))}, v{ang}\nv_sin_f32 v{s}, v{c}\nv_cos_f32 v{c}, v{c}')
            else:
                p(f'''v_sin_f32 v{s}, v{ang}
                v_and_b32 v{c}, 1, v0
                v_lshlrev_b32 v{c}, 31, v{c}
                v_xor_b32 v{c}, -1.0, v{c}
                v_cmp_gt_u32 s[76:77], 32, v0
                v_cndmask_b32 v{s}, v{s}, v{c}, s[76:77]
                v_cos_f32 v{c}, v{ang}''')
            p(f'{CVT} v{vHC+4*kk+tq}, v{c}, -v{s}')
    return p
def y_loads():
    L = []
    g = Prog()
    g(f'''s_lshl_b32 s52, s{sBP}, 16
    s_lshl_b32 s53, s{sW}, 13
    s_add_u32 s52, s52, s53
    s_add_u32 s69, s52, {Y_OFF}
    v_sub_u32 v12, 0, v2
    v_and_b32 v12, 3, v12
    v_xor_b32 v12, v12, v0
    v_lshlrev_b32 v12, 4, v12''')
    for b in range(2):
        for h2 in range(2):
            g(f's_add_u32 m0, s{sLB}, {16384 + (b*2+h2)*4096}\ns_add_u32 s70, s69, {b*32768 + h2*4096}')
            for q in range(4):
                g(f'buffer_load_dwordx4 v12, {WS}, s70 offen offset:{q*1024} sc1 lds', f'yd{b}{h2}')
                L.append(g); g = Prog()
    return L
def y_reads():
    L = []
    g = Prog()
    g(f'''v_lshrrev_b32 v12, 2, v1
    v_sub_u32 v12, 0, v12
    v_xor_b32 v12, v12, v2
    v_and_b32 v12, 3, v12
    v_lshlrev_b32 v12, 4, v12
    v_lshl_add_u32 v12, v1, 6, v12
    v_add_u32 v12, s{sLB}, v12''')
    for b in range(2):
        for hq in range(4):
            for rt in range(2):
                if (hq & 1) == 0 and rt == 0: g.wvm(f'yd{b}{hq>>1}')
                g(f'ds_read_b128 {A(((b*4+hq)*2+rt)*4,4)}, v12 offset:{16384 + ((b*4+hq)*2+rt)*1024}')
                L.append(g); g = Prog()
    return L
vXX = 20
def fin_loads():
    g = Prog()
    g(f'''v_lshrrev_b32 v14, 2, v0
    v_and_b32 v48, 3, v0
    v_lshlrev_b32 v14, 16, v14
    v_lshl_add_u32 v14, v48, 4, v14
    v_add_u32 v48, {16*65536-1024}, v14
    s_add_u32 m0, s{sLB}, 12288''')
    g(f'buffer_load_dwordx4 v14, {X}, s71 offen lds\nbuffer_load_dwordx4 v48, {X}, s71 offen offset:1024 lds', 'xfin')
    return g
def fin_xread():
    g = Prog()
    g.wvm('xfin')
    g(f'ds_read_b128 v[36:39], v54 offset:12288\nds_read_b128 v[248:251], v54 offset:12304')
    u = Prog()
    for k in range(8):
        r = 36 + k if k < 4 else 244 + k
        u(f'v_lshlrev_b32 v{vXX+2*k}, 16, v{r}\nv_and_b32 v{vXX+2*k+1}, 0xffff0000, v{r}')
    return g, u
def r_mfmas():
    p = Prog()
    for b in range(2):
        for hq in range(4):
            for rt in range(2):
                for dq in range(4):
                    d = V(vRING + ((b*4+dq)*2+rt)*4, 4)
                    p(f'{M16} {d}, {A(((b*4+hq)*2+rt)*4,4)}, {V(vG+(hq*4+dq)*4,4)}, {d if hq else 0}')
    return p
def g_part_writes():
    L = []
    g = Prog()
    for sl in (2, 3, 1):
        for k in range(4):
            g(f'ds_write_b128 v15, {V(vACC+16*sl+4*k,4)} offset:{(sl-1)*4096+k*1024}'); L.append(g); g = Prog()
    return L
def fin_addr(t):
    p = Prog()
    p(f'''v_and_b32 v{t}, 3, v0
    v_bfe_u32 v{t+1}, v0, 3, 2
    v_lshl_add_u32 v{t}, v{t+1}, 2, v{t}
    v_lshlrev_b32 v{t}, 4, v{t}
    v_bfe_u32 v{t+1}, v0, 2, 1
    v_lshl_add_u32 v{t}, v{t+1}, 10, v{t}
    v_lshrrev_b32 v{t+1}, 5, v0
    v_lshl_add_u32 v{t}, v{t+1}, 8, v{t}
    s_lshl_b32 s54, s{sW}, 11
    s_add_u32 s54, s54, 16384
    v_add_u32 v16, s54, v{t}
    v_add_u32 v3, {2*WST}, v16
    v_and_b32 v54, 31, v0
    v_and_b32 v{t}, 32, v0
    v_lshl_add_u32 v54, v54, 6, v{t}
    v_add_u32 v54, s{sLB}, v54
    v_lshlrev_b32 v{t}, 4, v0
    v_add_u32 v15, s{sLB}, v{t}''')
    for sl in range(1, 4):
        p(f's_xor_b32 s54, s{sW}, {sl}\ns_mul_i32 s54, s54, {WST}\ns_add_u32 s54, s54, {(sl-1)*4096}\nv_add_u32 v{16+sl}, s54, v{t}')
    return p
vBU, vE = 248, 36
def silu_part():
    rd = Prog(); f = Prog()
    for k in range(4):
        for sl in range(1, 4):
            rd(f'ds_read_b128 {V(vACC+16*sl+4*k,4)}, v{16+sl} offset:{k*1024}')
    f(f's_mov_b32 s74, {fx(-math.log2(math.e))}')
    a = vACC
    for k4 in range(0, 16, 4):
        for k in range(k4, k4+4): f(f'v_add_f32 v{a+16+k}, v{a+16+k}, v{a+32+k}\nv_add_f32 v{a+k}, v{a+k}, v{a+48+k}')
        for k in range(k4, k4+4): f(f'v_add_f32 v{a+k}, v{a+k}, v{a+16+k}')
        for k in range(4): f(f'v_mul_f32 v{vE+k}, s74, v{a+k4+k}')
        for k in range(4): f(f'v_exp_f32 v{vE+k}, v{vE+k}')
        for k in range(4): f(f'v_add_f32 v{vE+k}, 1.0, v{vE+k}')
        for k in range(4): f(f'v_rcp_f32 v{vE+k}, v{vE+k}')
        for k in range(4): f(f'v_mul_f32 v{a+k4+k}, v{a+k4+k}, v{vE+k}')
    return rd, f
def r_pack(k):
    p = Prog(); r = vRING + 8*k
    for j in range(4): p(f'{CVT} v{r+j}, v{r+2*j}, v{r+2*j+1}')
    p(f'ds_write_b128 v15, {V(r,4)} offset:{16384+1024*k}')
    return p
def finish(sc):
    p = Prog()
    p.wds(); stamp(p, 'fb0'); p('s_barrier'); stamp(p, 'fb1')
    for ws in range(4):
        for kk in range(2):
            p(f'ds_read_b128 {A((ws*2+kk)*4,4)}, v{3 if ws >= 2 else 16} offset:{(ws&1)*WST+kk*512}')
    S = vG
    for k in range(8): p(f'{M32} {V(S,16)}, {A(4*k,4)}, {V(vHC+4*(k&1),4)}, {V(S,16) if k else 0}')
    o = vACC + 16
    for k in range(0, 16, 2):
        p(f'v_pk_fma_f32 {V(S+k,2)}, {V(S+k,2)}, {V(vACC+k,2)}, {V(vXX+k,2)}')
        p(f'{CVT} v{o+k//2}, v{S+k}, v{S+k+1}')
        if k in (6, 14): p(f'ds_write_b128 v54, {V(o+(k>>3)*4,4)} offset:{12288+(k>>3)*16}')
    p.wds()
    p(f'ds_read_b128 {V(o,4)}, v15 offset:12288\nds_read_b128 {V(o+4,4)}, v15 offset:13312')
    p(f'buffer_store_dwordx4 {V(o,4)}, v14, {OUT}, s71 offen {sc}\nbuffer_store_dwordx4 {V(o+4,4)}, v48, {OUT}, s71 offen offset:1024 {sc}')
    return p
def w2_l2pf():
    L = []
    g = Prog()
    g(f'''s_mul_i32 s52, s{sW}, {448*1024}
    s_lshl_b32 s53, s{sCB}, 7
    s_add_u32 s52, s52, s53
    v_lshrrev_b32 v221, 2, v0
    v_lshlrev_b32 v221, 10, v221
    v_add_u32 v221, s52, v221
    v_add_u32 v222, 16384, v221''')
    pre = g
    for k in range(4):
        g = Prog()
        if not k & 1: grp_soff(g, 2 + (k >> 1), 58, True)
        g(f'buffer_load_dword v{224+k}, v{221+(k&1)}, {W2}, s58 offen'); L.append(g)
    return pre, L
```

```python
from k_common import *
vFW, vIV, vTMP = 128, 192, 224
vWV, vXA, aZ = 240, 24, 224
def p2_ids():
    p = Prog()
    p(f'''s_sub_u32 s61, 32, s{sCP}
    s_cmp_eq_u32 s{sCP}, 0
    s_cselect_b32 s61, 16, s61
    s_cmp_lt_u32 s{sW}, 2
    s_cselect_b32 s62, s{sCP}, s61''')
    return p
def p2_fwd_consts(t=vTMP):
    p = Prog()
    kf, ang, c, s = t, t+1, t+2, t+3
    p(f'''s_and_b32 s54, s{sW}, 1
    s_lshl_b32 s54, s54, 10
    s_add_u32 s54, s54, s62
    v_lshlrev_b32 v{kf}, 5, v1
    v_add_u32 v{kf}, s54, v{kf}
    v_cvt_f32_u32 v{kf}, v{kf}
    v_cvt_f32_u32 v{ang}, v2
    v_mul_f32 v{kf}, {fx(1/2048)}, v{kf}
    v_mul_f32 v{ang}, 4.0, v{ang}
    v_mul_f32 v{ang}, v{ang}, v{kf}''')
    for q in range(4):
        for j in range(4):
            p(f'v_cos_f32 v{c}, v{ang}\nv_sin_f32 v{s}, v{ang}')
            if j < 3: p(f'v_add_f32 v{ang}, v{ang}, v{kf}')
            elif q < 3: p(f'v_fmamk_f32 v{ang}, v{kf}, {fx(13.0)}, v{ang}')
            C, S, nC, nS = f'v{c}', f'v{s}', f'-v{c}', f'-v{s}'
            rot = [(C, S, nS), (nS, C, nC), (nC, nS, S), (S, nC, C)][j]
            r = lambda et, ri: vFW + ((et*2+ri)*4+q)*4 + j
            p(f'{CVT} v{r(0,0)}, {C}, {S}\n{CVT} v{r(0,1)}, {nS}, {C}\n{CVT} v{r(1,0)}, {rot[0]}, {rot[1]}\n{CVT} v{r(1,1)}, {rot[2]}, {rot[0]}')
    return p
def p2_inv_consts(t=vTMP):
    p = Prog()
    bf, st, ang, c, s = t, t+1, t+2, t+3, t+4
    p(f'''s_lshl_b32 s54, s{sW}, 4
    v_add_u32 v{bf}, s54, v1
    v_cvt_f32_u32 v{bf}, v{bf}
    v_mul_f32 v{st}, {fx(1/64)}, v{bf}
    v_mul_f32 v{bf}, {fx(1/2048)}, v{bf}''')
    for cs in range(2):
        p(f'''v_lshlrev_b32 v{ang}, 7, v2
        v_add_u32 v{ang}, s{61 if cs else sCP}, v{ang}
        v_cvt_f32_u32 v{ang}, v{ang}
        v_mul_f32 v{ang}, v{ang}, v{bf}''')
        for jj in range(2):
            for r in range(4):
                p(f'v_cos_f32 v{c}, v{ang}\nv_sin_f32 v{s}, v{ang}')
                if r < 3: p(f'v_add_f32 v{ang}, v{ang}, v{st}')
                elif jj == 0: p(f'v_fmamk_f32 v{ang}, v{st}, {fx(13.0)}, v{ang}')
                R = lambda ri: vIV + ((cs*2+ri)*2+jj)*4 + r
                p(f'{CVT} v{R(0)}, v{c}, -v{s}\n{CVT} v{R(1)}, v{s}, v{c}')
    return p
def p2_wloads():
    L = []
    g = Prog()
    g(f'''s_and_b32 s52, s{sW}, 1
    s_lshl_b32 s52, s52, 10
    s_add_u32 s52, s52, s62
    s_mul_i32 s52, s52, 514
    s_lshl_b32 s53, s{sHC2}, 5
    s_add_u32 s63, s52, s53
    s_mul_i32 s53, s{sHC2}, {64*514}
    s_add_u32 s52, s52, s53
    v_lshrrev_b32 v228, 5, v0
    v_mul_u32_u24 v228, {32*514-512}, v228
    v_lshl_add_u32 v228, v0, 4, v228
    v_add3_u32 v228, v228, s52, 8
    v_mul_u32_u24 v220, {128*514}, v2
    v_lshl_add_u32 v220, v1, 1, v220''')
    for k in range(16): g(f'v_mov_b32 v{vWV+k}, 0')
    pre = g; g = Prog()
    for k in range(8):
        et, r = k >> 2, k & 3
        g(f's_add_u32 s64, s63, {(16*et+r)*32*514}')
        g(f'buffer_load_short_d16_hi v{vWV+k}, v220, {WR}, s64 offen offset:2')
        g(f'buffer_load_short_d16_hi v{vWV+8+k}, v220, {WI}, s64 offen offset:2')
        L.append(g); g = Prog()
    return pre, L
def p2_zloads(addr=True):
    p = Prog()
    if addr: p(f'''s_lshl_b32 s69, s{sHC2}, 5
    s_add_u32 s69, s69, s62
    s_lshl_b32 s69, s69, 12
    s_add_u32 s69, s69, {Z_OFF}''')
    for q in range(4): p(f'buffer_load_dwordx4 {A(aZ+4*q,4)}, v18, {WS}, s69 offen offset:{1024*q} sc1')
    return p
def fwd_mf():
    p = Prog()
    for q in range(4):
        for k in range(4):
            d = V(vXA+4*k, 4)
            p(f'{M16} {d}, {V(vFW+(k*4+q)*4,4)}, {A(aZ+4*q,4)}, {d if q else 0}')
    return p
def z_retry():
    t = 'ZRETRY:\n    s_mov_b32 s3, 0\nZLOOP:\n    s_nop 7\n'
    t += ''.join('    ' + x.text + '\n' for x in p2_zloads(False).l) + '    s_waitcnt vmcnt(0)\n'
    t += ''.join('    ' + x.text + '\n' for x in fwd_mf().l)
    t += f'''    s_nop 7
    s_nop 7
    s_add_u32 s3, s3, 1
    s_cmp_gt_u32 s3, 4000
    s_cbranch_scc1 ZBACK
    v_cmp_u_f32 vcc, v{vXA}, v{vXA}
    s_cbranch_vccnz ZLOOP
    s_branch ZBACK
'''
    return t
def p2_fwd():
    p = Prog(); t = vTMP
    p.add(fwd_mf())
    p(f'''s_lshl_b32 s52, s{sW}, 11
    s_add_u32 s52, s52, {L_XP}
    v_add_u32 v16, s52, v18
    v_add_u32 v17, {L_XP}, v18
    v_cmp_u_f32 vcc, v{vXA}, v{vXA}
    s_cbranch_vccnz ZRETRY
    ZBACK:''')
    stamp(p, 'zok')
    for et in range(2):
        xr, xi, wr, wi = vXA+8*et, vXA+8*et+4, vWV+4*et, vWV+8+4*et
        for k in (0, 2):
            p(f'v_pk_mul_f32 {V(t+k,2)}, {V(xr+k,2)}, {V(wr+k,2)}\nv_pk_mul_f32 {V(t+4+k,2)}, {V(xr+k,2)}, {V(wi+k,2)}')
        for k in (0, 2):
            p(f'v_pk_fma_f32 {V(t+k,2)}, {V(xi+k,2)}, {V(wi+k,2)}, {V(t+k,2)} neg_lo:[1,0,0] neg_hi:[1,0,0]')
            p(f'v_pk_fma_f32 {V(t+4+k,2)}, {V(xi+k,2)}, {V(wr+k,2)}, {V(t+4+k,2)}')
        for r in range(4): p(f'{CVT} v{t+8+4*et+r}, v{t+r}, v{t+4+r}')
        p(f'ds_write_b128 v16, {V(t+8+4*et,4)} offset:{1024*et}')
    p.wds(); p('s_barrier')
    return p
def p2_inv(lab, f0, f1):
    p = Prog(); t = 160; va = vFW
    for k in range(8): p(f'ds_read_b128 {A(aZ+4*k,4)}, v17 offset:{1024*k}')
    p.add(f0)
    acc = lambda cs, ri, hi: va + ((cs*2+ri)*2+hi)*4
    for cs in range(2):
        for jj in range(4):
            for ri in range(2):
                d = V(acc(cs, ri, jj >> 1), 4)
                p(f'{M16} {d}, {A(aZ+(cs*4+jj)*4,4)}, {V(vIV+((cs*2+ri)*2+(jj&1))*4,4)}, {d if jj&1 else 0}')
    p.add(f1)
    p(f'''v_and_b32 v{t}, 1, v1
    v_lshlrev_b32 v{t}, 31, v{t}
    v_or_b32 v{t}, 1.0, v{t}
    s_lshl_b32 s52, s{sW}, 8
    s_add_u32 s52, s52, s{sHC2}
    s_lshl_b32 s52, s52, 4
    s_add_u32 s52, s52, s{sCP}
    s_lshl_b32 s52, s52, 7
    s_add_u32 s64, s52, {Y_OFF}
    v_lshlrev_b32 v{t+2}, 15, v1
    v_lshl_add_u32 v{t+2}, v2, 4, v{t+2}''')
    for cs in range(2):
        for ri in range(2):
            for k in (0, 2):
                p(f'v_pk_fma_f32 {V(acc(cs,ri,0)+k,2)}, {V(acc(cs,ri,1)+k,2)}, {V(t,2)}, {V(acc(cs,ri,0)+k,2)} op_sel_hi:[1,0,1]')
    vr, vi, wr, wi = acc(0,0,0), acc(0,1,0), acc(1,0,0), acc(1,1,0)
    p(f's_cmp_eq_u32 s{sCP}, 0\ns_cbranch_scc1 {lab}')
    tt = va + 4
    for k in (0, 2):
        p(f'''v_pk_add_f32 {V(tt+k,2)}, {V(vi+k,2)}, {V(wi+k,2)} neg_lo:[0,1] neg_hi:[0,1]
        v_pk_add_f32 {V(vi+k,2)}, {V(vi+k,2)}, {V(wi+k,2)}
        v_pk_add_f32 {V(wi+k,2)}, {V(wr+k,2)}, {V(vr+k,2)} neg_lo:[0,1] neg_hi:[0,1]
        v_pk_add_f32 {V(vr+k,2)}, {V(vr+k,2)}, {V(wr+k,2)}
        v_mov_b32 v{wr+k}, v{tt+k}
        v_mov_b32 v{wr+k+1}, v{tt+k+1}''')
    p(f'{lab}:')
    for rho, (u, v) in enumerate(((vr, vi), (wr, wi))):
        o = t + 4 + 4*rho
        p(f'{CVT} v{o}, v{u}, v{u+1}\n{CVT} v{o+1}, v{u+2}, v{u+3}\n{CVT} v{o+2}, v{v}, v{v+1}\n{CVT} v{o+3}, v{v+2}, v{v+3}')
        p(f'buffer_store_dwordx4 {V(o,4)}, v{t+2}, {WS}, s64 offen offset:{64*rho} sc1', 'yst')
    return p
```

```python
from k_common import *
import k_g1 as G1, k_p2 as P2, k_g2 as G2
NAME = 'recurrent_scan__spectral_gfnet__mixer_channel_mlp__prompt_kernel'
ZF, HF, YF = FL_OFF, FL_OFF + 4096, FL_OFF + 8192
vOOB, vPA, vP, vONEI = 5, 6, 7, 8
tail = []
def poll_issue(srd, va, so): return Prog()(f'buffer_load_dword v{vP}, v{va}, {srd}, {so} offen sc1')
def poll_check(name, srd, va, so):
    p = Prog()
    p(f'v_cmp_ne_u32 vcc, 1, v{vP}\ns_cbranch_vccnz SPIN_{name}\nBACK_{name}:')
    tail.append(f'''SPIN_{name}:
    s_mov_b32 s3, 0
LOOP_{name}:
    buffer_load_dword v{vP}, v{va}, {srd}, {so} offen sc1
    s_add_u32 s3, s3, 1
    s_cmp_gt_u32 s3, 20000
    s_cbranch_scc1 BACK_{name}
    s_waitcnt vmcnt(0)
    v_cmp_ne_u32 vcc, 1, v{vP}
    s_cbranch_vccnz LOOP_{name}
    s_branch BACK_{name}
''')
    return p
def flag_store(tag, scalc):
    p = Prog(); p(scalc); p.wvm(tag)
    p(f'buffer_store_dword v{vONEI}, v{vOOB}, {WS}, s56 offen sc1')
    return p
def w2rd(gam):
    L = G2.w2_reads(gam)
    for g in L: g.l[-1].tag = f'w2r{gam}'
    return L
def w2ld(gam):
    L = G2.w2_dma(gam)
    prev = [k for k in range(gam) if G2.SLOT[k] == G2.SLOT[gam]]
    if prev:
        g = Prog(); g.wdsn(f'w2r{prev[-1]}'); L[0] = g.add(L[0])
    return L
def flat(L):
    p = Prog()
    for g in L: p.add(g)
    return p
isvalu = lambda x: x.kind == 'valu'
def kernel(diag, cfg):
    p = Prog(); prologue(p, 'EXIT', diag)
    if 'xcb' in cfg: p(f's_xor_b32 s{sCB}, s{sCB}, {cfg["xcb"]}')
    if 'xhc' in cfg: p(f's_xor_b32 s{sHC}, s{sHC}, {cfg["xhc"]}')
    if cfg.get('pf', '1') == '1':
        p(f'''s_getpc_b64 s[52:53]
        PCREF:
        s_lshl_b32 s54, s{sW}, 13
        v_lshlrev_b32 v230, 7, v0
        v_add_u32 v230, s54, v230
        v_min_u32 v230, CODE_END-PCREF, v230
        v_mov_b32 v231, s53
        v_add_co_u32 v230, vcc, s52, v230
        v_addc_co_u32 v231, vcc, 0, v231, vcc
        global_load_dword v223, v[230:231], off''')
    G1.g1_addr(p)
    for q in range(7): p.add(G1.g1_dma_addr(q))
    p(f'''s_cmp_lg_u32 s2, 0
    s_cbranch_scc1 NOZERO
    v_mov_b32 v224, 0
    v_mov_b32 v225, 0
    v_mov_b32 v226, 0
    v_mov_b32 v227, 0
    s_mul_i32 s52, s{sW}, 3072
    s_add_u32 s52, s52, {FL_OFF}
    v_lshlrev_b32 v228, 4, v0''')
    for k in range(3): p(f'buffer_store_dwordx4 v[224:227], v228, {WS}, s52 offen offset:{1024*k} sc1')
    p('NOZERO:\ns_waitcnt lgkmcnt(0)')
    stamp(p, 'ka')
    xl, wl = G1.g1_xl, G1.g1_wl
    for g in xl(0) + wl(0): p.add(g)
    stamp(p, 'l0')
    p.add(G1.g1_consts())
    stamp(p, 'c0')
    c = G1.d32_consts().add(G2.w2_addr(224)).add(P2.p2_ids())
    c(f's_or_b32 s52, s2, s{sW}\nv_add_u32 v53, s52, v0\nv_lshlrev_b32 v53, 8, v53\nv_mov_b32 v55, 1')
    p.add(c)
    for g in xl(1): p.add(g)
    p.add(P2.p2_fwd_consts())
    wpre, wl2 = P2.p2_wloads(); ppre, zpo = G1.z_poison(); p.add(wpre).add(ppre)
    stamp(p, 'c1')
    w1, w2, w3 = wl(1), wl(2), wl(3)
    npre = int(cfg.get('npre', 4))
    for g in w1[:npre]: p.add(g)
    stamp(p, 'iss')
    hook = Prog()(f'buffer_store_dword v55, v53, {DBG}, 0 offen sc1')
    go = Prog()(f'v_mov_b32 v{vPA}, 0\nv_mov_b32 v{vONEI}, 1\nv_min_u32 v{vOOB}, 1, v0\nv_lshlrev_b32 v{vOOB}, 28, v{vOOB}').add(poll_issue(DBG, vPA, 0))
    sched = {0: w1[npre:] + xl(2), 1: xl(3), 2: w2[:4], 3: w2[4:] + xl(4)[:2], 4: xl(4)[2:] + xl(5), 5: w3[:4], 6: w3[4:] + G1.b1_loads(), 7: xl(6), 8: xl(7) + [go]}
    for k in range(16): sched.setdefault(k, [])
    wls, wrs = cfg.get('wl', '8acdef'), cfg.get('wr', '')
    for k, st in enumerate(wls): sched[int(st, 16)] += w2ld(k)
    sched[int(cfg.get('zp', 7))] += zpo
    if cfg.get('wpf', '1') != '': sched[int(cfg.get('wpf', '1'))] += [Prog()(f'buffer_load_ushort v229, v228, {WR}, 0 offen\nbuffer_load_ushort v230, v228, {WI}, 0 offen')]
    wg1 = cfg.get('wg1', '')
    for k, st in enumerate(wg1): sched[int(st, 16)].append(wl2[k])
    zfl = poll_check('go', DBG, vPA, 0).add(flag_store('zpo', f's_lshl2_add_u32 s56, s{sHC}, s{sW}\ns_lshl4_add_u32 s56, s56, s{sRB}\ns_lshl2_add_u32 s56, s56, {ZF}'))
    sched[int(cfg.get('zf', 12))].insert(0, zfl)
    xds = {}
    for k, st in enumerate(wrs): xds[int(st, 16)] = xds.get(int(st, 16), []) + w2rd(k)
    p.add(G1.g1_main(sched, hook=hook, xds=xds))
    stamp(p, 'g1')
    a, b = G1.g1_stats_z()
    p.add(a).add(b)
    stamp(p, 'z')
    pre, Lg = G1.g1_gelu(); p.add(pre)
    zpi = Prog()(f's_lshr_b32 s60, s62, 3\ns_lshl2_add_u32 s60, s{sHC2}, s60\ns_lshl_b32 s60, s60, 6\ns_add_u32 s60, s60, {ZF}\nv_lshlrev_b32 v{vPA}, 2, v1').add(poll_issue(WS, vPA, 's60'))
    zn = int(cfg.get('zn', 6))
    fills = {k: [] for k in range(7)}
    gls, grs = cfg.get('gl', '0011'), cfg.get('gr', '001122')
    for k, st in enumerate(gls): fills[int(st)] += w2ld(len(wls) + k)
    for k, st in enumerate(grs): fills[int(st)] += w2rd(len(wrs) + k)
    for k, st in enumerate(cfg.get('wat', '22334455')): fills[int(st)].append(wl2[len(wg1)+k])
    assert len(wg1) + len(cfg.get('wat', '22334455')) == 8
    fills[0].append(G2.b2_load())
    nl, nr = len(wls) + len(gls), len(wrs) + len(grs)
    fills[0].insert(0, zpi)
    zl = poll_check('z', WS, vPA, 's60').add(P2.p2_zloads()); stamp(zl, 'zpoll'); tail.append(P2.z_retry())
    if zn < 7: fills[zn].append(zl)
    for n, g in enumerate(Lg):
        f = fills.get(n, [])
        g, rest = weave(g, f, start=0, every=max(1, 48//max(1, len(f))), pred=isvalu); p.add(g).add(rest)
    stamp(p, 'gelu')
    if zn == 7: p.add(zl)
    gc = G2.g_consts(0); hc = G2.h_consts(232)
    def take(n):
        q = Prog(); q.l = gc.l[:n]; gc.l = gc.l[n:]; return q
    wrest = [g for k in range(nl, 14) for g in w2ld(k)]; n1, n2, n3 = [int(cfg.get(k, d)) for k, d in (('n1', 0), ('n2', 8), ('n3', 32))]
    c, rest = weave(P2.p2_inv_consts(), wrest[:n1], every=8, pred=isvalu); p.add(c).add(rest).add(G2.h_addr(224))
    hfl = flag_store('hst', f's_lshl2_add_u32 s56, s{sRB}, s{sW}\ns_lshl4_add_u32 s56, s56, s{sHC}\ns_lshl2_add_u32 s56, s56, {HF}')
    p.add(hfl)
    stamp(p, 'hfl')
    p.add(hc).add(take(int(cfg.get('g0', 0))))
    p.add(P2.p2_fwd())
    stamp(p, 'fwd')
    hl = G2.h_loads()
    p.add(P2.p2_inv('CP0', G2.b2_init(), Prog()))
    stamp(p, 'p2')
    g1 = int(cfg.get('g1', 100)); c, rest = weave(take(g1), wrest[n1:n2], every=max(1, (g1-6)//max(1, n2-n1)), pred=isvalu); p.add(c).add(rest)
    yfl = flag_store('yst', f's_lshl4_add_u32 s56, s{sW}, s{sHC2}\ns_lshl4_add_u32 s56, s56, s{sCP}\ns_lshl2_add_u32 s56, s56, {YF}')
    p.add(yfl); stamp(p, 'yfl')
    p(f's_lshl_b32 s60, s{sBP}, 7\ns_lshl4_add_u32 s60, s{sW}, s60\ns_add_u32 s60, s60, {HF}\nv_and_b32 v{vPA}, 0x13, v0\nv_lshlrev_b32 v{vPA}, 2, v{vPA}')
    p.add(poll_issue(WS, vPA, 's60'))
    g2 = int(cfg.get('g2', 80)); c, rest = weave(take(g2), wrest[n2:n3], every=max(1, g2//max(1, n3-n2)), pred=isvalu); p.add(c).add(rest)
    p.add(poll_check('h', WS, vPA, 's60')); stamp(p, 'hpoll')
    wr = [g for k in range(nr, 14) for g in w2rd(k)]
    nh = int(cfg.get('nh', 8))
    p.add(flat(hl[:nh]))
    c, rest = weave(gc, hl[nh:16] + wrest[n3:], every=8, pred=isvalu); p.add(c).add(rest)
    stamp(p, 'gc2')
    ypi = Prog()(f's_lshr_b32 s60, s{sBP}, 3\ns_lshl2_add_u32 s60, s60, s{sW}\ns_lshl_b32 s60, s60, 8\ns_add_u32 s60, s60, {YF}\nv_lshlrev_b32 v{vPA}, 2, v0').add(poll_issue(WS, vPA, 's60'))
    yl = G2.y_loads(); yl[0] = stamp(poll_check('y', WS, vPA, 's60'), 'ypoll').add(yl[0])
    hl[int(cfg.get('yp', 42))].add(ypi)
    hl[34].wdsn('w2r13'); hl[34].add(G2.fin_loads())
    xr, xu = G2.fin_xread(); hl[52].add(xr)
    yr = G2.y_reads(); gw = G2.g_part_writes()
    m = G2.g2_mfmas()
    m, rest = weave(m, wr, start=int(cfg.get('rs', 1)), per=2, pred=ismfma); assert not rest.l
    m, rest = weave(m, G2.fin_addr(36), start=40, per=2, pred=ismfma); assert not rest.l
    m, rest = weave(m, xu, start=78, per=2, pred=ismfma); assert not rest.l
    m, rest = weave(m, gw[:8], start=106, per=2, pred=ismfma); assert not rest.l
    m, rest = weave(m, hl[16:], start=1, every=2, pred=ismfma); assert not rest.l
    m, rest = weave(m, yl, start=81+int(cfg.get('yd', 0)), pred=ismfma); assert not rest.l
    p.add(m)
    stamp(p, 'g2')
    for g in yr[:4]: p.add(g)
    rm = G2.r_mfmas(); nr1 = int(cfg.get('r1', 16))
    r1 = Prog(); r1.l = rm.l[:nr1]; r2 = Prog(); r2.l = rm.l[nr1:]
    f1 = gw[8:] + yr[4:]
    r1, rest = weave(r1, f1, pred=ismfma); p.add(r1).add(rest)
    p.wds(); p('s_barrier')
    rd, f = G2.silu_part()
    f2 = Prog().add(rd)
    fa = Prog(); fa.l = f.l[:56]; fb = Prog(); fb.l = f.l[56:]
    f2.add(fa)
    for k in range(4): f2.add(G2.r_pack(k))
    f2.add(fb)
    r2, rest = weave(r2, f2, per=2, pred=ismfma); p.add(r2)
    stamp(p, 'r')
    for k in range(4, 8): p.add(G2.r_pack(k))
    p.add(rest)
    p.add(G2.finish(cfg.get('sc', '')))
    stamp(p, 'fin')
    if diag:
        p('s_waitcnt vmcnt(0)'); stamp(p, 'end')
        if 'leak' in cfg:
            i = int(cfg['leak'])
            p(f'''s_waitcnt lgkmcnt(0)
            s_add_u32 s52, s{86+2*i}, 4000
            s_mov_b32 s3, 0
            LEAK:
            s_memrealtime s[54:55]
            s_add_u32 s3, s3, 1
            s_cmp_gt_u32 s3, 100000
            s_cbranch_scc1 EXIT
            s_waitcnt lgkmcnt(0)
            s_sub_u32 s54, s54, s52
            s_cmp_lt_i32 s54, 0
            s_cbranch_scc1 LEAK''')
        else: stamp_out(p, 0, 'EXIT')
    p('EXIT:'); return p
if __name__ == '__main__':
    diag = 'diag' in sys.argv[2:]
    cfg = dict(a.split('=') for a in sys.argv[2:] if '=' in a)
    st = {}
    if diag: STAMPS.extend(cfg.get('st', 'iss,g1,z,gelu,p2,g2,end').split(','))
    body = finalize(kernel(diag, cfg), st) + '    s_endpgm\n' + ''.join(tail) + 'CODE_END:\n'; print(st)
    if 'cyc' in sys.argv[1]: body = body.replace('s_memrealtime', 's_memtime')
    open(sys.argv[1], 'w').write(build_file([dict(name=NAME, grid=256, block=256, lds=163840, body=body, nfv=512, accum=256)], single=True))
```

```python
from k_common import *
import k_g1 as G1, k_p2 as P2, k_g2 as G2
NAME = 'recurrent_scan__spectral_gfnet__mixer_channel_mlp__prompt_kernel'
ZF, HF, YF = FL_OFF, FL_OFF + 4096, FL_OFF + 8192
vOOB, vPA, vP, vONEI = 5, 6, 7, 8
tail = []
def poll_issue(srd, va, so): return Prog()(f'buffer_load_dword v{vP}, v{va}, {srd}, {so} offen sc1')
def poll_check(name, srd, va, so):
    p = Prog()
    p(f'v_cmp_ne_u32 vcc, 1, v{vP}\ns_cbranch_vccnz SPIN_{name}\nBACK_{name}:')
    tail.append(f'''SPIN_{name}:
    s_mov_b32 s3, 0
LOOP_{name}:
    buffer_load_dword v{vP}, v{va}, {srd}, {so} offen sc1
    s_add_u32 s3, s3, 1
    s_cmp_gt_u32 s3, 20000
    s_cbranch_scc1 BACK_{name}
    s_waitcnt vmcnt(0)
    v_cmp_ne_u32 vcc, 1, v{vP}
    s_cbranch_vccnz LOOP_{name}
    s_branch BACK_{name}
''')
    return p
def flag_store(tag, scalc):
    p = Prog(); p(scalc); p.wvm(tag)
    p(f'buffer_store_dword v{vONEI}, v{vOOB}, {WS}, s56 offen sc1')
    return p
def w2rd(gam):
    L = G2.w2_reads(gam)
    for g in L: g.l[-1].tag = f'w2r{gam}'
    return L
def w2ld(gam):
    L = G2.w2_dma(gam)
    prev = [k for k in range(gam) if G2.SLOT[k] == G2.SLOT[gam]]
    if prev:
        g = Prog(); g.wdsn(f'w2r{prev[-1]}'); L[0] = g.add(L[0])
    return L
def flat(L):
    p = Prog()
    for g in L: p.add(g)
    return p
isvalu = lambda x: x.kind == 'valu'
def kernel(diag, cfg):
    p = Prog(); prologue(p, 'EXIT', diag)
    if 'xcb' in cfg: p(f's_xor_b32 s{sCB}, s{sCB}, {cfg["xcb"]}')
    if 'xhc' in cfg: p(f's_xor_b32 s{sHC}, s{sHC}, {cfg["xhc"]}')
    if cfg.get('pf', '1') == '1':
        p(f'''s_getpc_b64 s[52:53]
        PCREF:
        s_lshl_b32 s54, s{sW}, 13
        v_lshlrev_b32 v230, 7, v0
        v_add_u32 v230, s54, v230
        v_min_u32 v230, CODE_END-PCREF, v230
        v_mov_b32 v231, s53
        v_add_co_u32 v230, vcc, s52, v230
        v_addc_co_u32 v231, vcc, 0, v231, vcc
        global_load_dword v223, v[230:231], off''')
    G1.g1_addr(p)
    for q in range(7): p.add(G1.g1_dma_addr(q))
    p(f'''s_cmp_lg_u32 s2, 0
    s_cbranch_scc1 NOZERO
    v_mov_b32 v224, 0
    v_mov_b32 v225, 0
    v_mov_b32 v226, 0
    v_mov_b32 v227, 0
    s_mul_i32 s52, s{sW}, 3072
    s_add_u32 s52, s52, {FL_OFF}
    v_lshlrev_b32 v228, 4, v0''')
    for k in range(3): p(f'buffer_store_dwordx4 v[224:227], v228, {WS}, s52 offen offset:{1024*k} sc1')
    p('NOZERO:\ns_waitcnt lgkmcnt(0)')
    stamp(p, 'ka')
    xl, wl = G1.g1_xl, G1.g1_wl
    for g in xl(0) + wl(0): p.add(g)
    stamp(p, 'l0')
    p.add(G1.g1_consts())
    stamp(p, 'c0')
    c = G1.d32_consts().add(G2.w2_addr(224)).add(P2.p2_ids())
    c(f's_or_b32 s52, s2, s{sW}\nv_add_u32 v53, s52, v0\nv_lshlrev_b32 v53, 8, v53\nv_mov_b32 v55, 1')
    p.add(c)
    for g in xl(1): p.add(g)
    p.add(P2.p2_fwd_consts())
    wpre, wl2 = P2.p2_wloads(); ppre, zpo = G1.z_poison(); p.add(wpre).add(ppre)
    stamp(p, 'c1')
    w1, w2, w3 = wl(1), wl(2), wl(3)
    npre = int(cfg.get('npre', 4))
    for g in w1[:npre]: p.add(g)
    stamp(p, 'iss')
    hook = Prog()(f'buffer_store_dword v55, v53, {DBG}, 0 offen sc1')
    go = Prog()(f'v_mov_b32 v{vPA}, 0\nv_mov_b32 v{vONEI}, 1\nv_min_u32 v{vOOB}, 1, v0\nv_lshlrev_b32 v{vOOB}, 28, v{vOOB}').add(poll_issue(DBG, vPA, 0))
    sched = {0: w1[npre:] + xl(2), 1: xl(3), 2: w2[:4], 3: w2[4:] + xl(4)[:2], 4: xl(4)[2:] + xl(5), 5: w3[:4], 6: w3[4:] + G1.b1_loads(), 7: xl(6), 8: xl(7) + [go]}
    for k in range(16): sched.setdefault(k, [])
    wls, wrs = cfg.get('wl', '9bdf'), cfg.get('wr', '')
    for k, st in enumerate(wls): sched[int(st, 16)] += w2ld(k)
    sched[int(cfg.get('zp', 3))] += zpo
    if cfg.get('wpf', '6') != '': sched[int(cfg.get('wpf', '6'))] += [Prog()(f'buffer_load_ushort v229, v228, {WR}, 0 offen\nbuffer_load_ushort v230, v228, {WI}, 0 offen')]
    wg1 = cfg.get('wg1', '')
    for k, st in enumerate(wg1): sched[int(st, 16)].append(wl2[k])
    zfl = poll_check('go', DBG, vPA, 0).add(flag_store('zpo', f's_lshl2_add_u32 s56, s{sHC}, s{sW}\ns_lshl4_add_u32 s56, s56, s{sRB}\ns_lshl2_add_u32 s56, s56, {ZF}'))
    sched[int(cfg.get('zf', 12))].insert(0, zfl)
    xds = {}
    for k, st in enumerate(wrs): xds[int(st, 16)] = xds.get(int(st, 16), []) + w2rd(k)
    p.add(G1.g1_main(sched, hook=hook, xds=xds))
    stamp(p, 'g1')
    a, b = G1.g1_stats_z()
    p.add(a).add(b)
    stamp(p, 'z')
    pre, Lg = G1.g1_gelu(); p.add(pre)
    zpi = Prog()(f's_lshr_b32 s60, s62, 3\ns_lshl2_add_u32 s60, s{sHC2}, s60\ns_lshl_b32 s60, s60, 6\ns_add_u32 s60, s60, {ZF}\nv_lshlrev_b32 v{vPA}, 2, v1').add(poll_issue(WS, vPA, 's60'))
    zn = int(cfg.get('zn', 6))
    fills = {k: [] for k in range(7)}
    gls, grs = cfg.get('gl', '0011'), cfg.get('gr', '001256')
    for k, st in enumerate(gls): fills[int(st)] += w2ld(len(wls) + k)
    for k, st in enumerate(grs): fills[int(st)] += w2rd(len(wrs) + k)
    for k, st in enumerate(cfg.get('wat', '22334455')): fills[int(st)].append(wl2[len(wg1)+k])
    assert len(wg1) + len(cfg.get('wat', '22334455')) == 8
    fills[0].append(G2.b2_load())
    nl, nr = len(wls) + len(gls), len(wrs) + len(grs)
    fills[0].insert(0, zpi)
    zl = poll_check('z', WS, vPA, 's60').add(P2.p2_zloads()); stamp(zl, 'zpoll'); tail.append(P2.z_retry())
    if zn < 7: fills[zn].append(zl)
    for n, g in enumerate(Lg):
        f = fills.get(n, [])
        g, rest = weave(g, f, start=0, every=max(1, 48//max(1, len(f))), pred=isvalu); p.add(g).add(rest)
    stamp(p, 'gelu')
    if zn == 7: p.add(zl)
    gc = G2.g_consts(0); hc = G2.h_consts(232)
    def take(n):
        q = Prog(); q.l = gc.l[:n]; gc.l = gc.l[n:]; return q
    wrest = [g for k in range(nl, 14) for g in w2ld(k)]; n1, n2, n3 = [int(cfg.get(k, d)) for k, d in (('n1', 0), ('n2', 8), ('n3', 32))]
    c, rest = weave(P2.p2_inv_consts(), wrest[:n1], every=8, pred=isvalu); p.add(c).add(rest).add(G2.h_addr(224))
    hfl = flag_store('hst', f's_lshl2_add_u32 s56, s{sRB}, s{sW}\ns_lshl4_add_u32 s56, s56, s{sHC}\ns_lshl2_add_u32 s56, s56, {HF}')
    p.add(hfl)
    stamp(p, 'hfl')
    p.add(hc).add(take(int(cfg.get('g0', 0))))
    p.add(P2.p2_fwd())
    stamp(p, 'fwd')
    hl = G2.h_loads()
    p.add(P2.p2_inv('CP0', G2.b2_init(), Prog()))
    stamp(p, 'p2')
    g1 = int(cfg.get('g1', 100)); c, rest = weave(take(g1), wrest[n1:n2], every=max(1, (g1-6)//max(1, n2-n1)), pred=isvalu); p.add(c).add(rest)
    yfl = flag_store('yst', f's_lshl4_add_u32 s56, s{sW}, s{sHC2}\ns_lshl4_add_u32 s56, s56, s{sCP}\ns_lshl2_add_u32 s56, s56, {YF}')
    p.add(yfl); stamp(p, 'yfl')
    p(f's_lshl_b32 s60, s{sBP}, 7\ns_lshl4_add_u32 s60, s{sW}, s60\ns_add_u32 s60, s60, {HF}\nv_and_b32 v{vPA}, 0x13, v0\nv_lshlrev_b32 v{vPA}, 2, v{vPA}')
    p.add(poll_issue(WS, vPA, 's60'))
    g2 = int(cfg.get('g2', 100)); c, rest = weave(take(g2), wrest[n2:n3], every=max(1, g2//max(1, n3-n2)), pred=isvalu); p.add(c).add(rest)
    p.add(poll_check('h', WS, vPA, 's60')); stamp(p, 'hpoll')
    wr = [g for k in range(nr, 14) for g in w2rd(k)]
    nh = int(cfg.get('nh', 8))
    p.add(flat(hl[:nh]))
    c, rest = weave(gc, hl[nh:16] + wrest[n3:], every=8, pred=isvalu); p.add(c).add(rest)
    stamp(p, 'gc2')
    ypi = Prog()(f's_lshr_b32 s60, s{sBP}, 3\ns_lshl2_add_u32 s60, s60, s{sW}\ns_lshl_b32 s60, s60, 8\ns_add_u32 s60, s60, {YF}\nv_lshlrev_b32 v{vPA}, 2, v0').add(poll_issue(WS, vPA, 's60'))
    yl = G2.y_loads(); yl[0] = stamp(poll_check('y', WS, vPA, 's60'), 'ypoll').add(yl[0])
    hl[int(cfg.get('yp', 42))].add(ypi)
    hl[34].wdsn('w2r13'); hl[34].add(G2.fin_loads())
    xr, xu = G2.fin_xread(); hl[52].add(xr)
    yr = G2.y_reads(); gw = G2.g_part_writes()
    m = G2.g2_mfmas()
    m, rest = weave(m, wr, start=int(cfg.get('rs', 1)), per=2, pred=ismfma); assert not rest.l
    m, rest = weave(m, G2.fin_addr(36), start=40, per=2, pred=ismfma); assert not rest.l
    m, rest = weave(m, xu, start=78, per=2, pred=ismfma); assert not rest.l
    m, rest = weave(m, gw[:8], start=106, per=2, pred=ismfma); assert not rest.l
    m, rest = weave(m, hl[16:], start=1, every=2, pred=ismfma); assert not rest.l
    m, rest = weave(m, yl, start=81+int(cfg.get('yd', 0)), pred=ismfma); assert not rest.l
    p.add(m)
    stamp(p, 'g2')
    for g in yr[:4]: p.add(g)
    rm = G2.r_mfmas(); nr1 = int(cfg.get('r1', 16))
    r1 = Prog(); r1.l = rm.l[:nr1]; r2 = Prog(); r2.l = rm.l[nr1:]
    f1 = gw[8:] + yr[4:]
    r1, rest = weave(r1, f1, pred=ismfma); p.add(r1).add(rest)
    p.wds(); p('s_barrier')
    rd, f = G2.silu_part()
    f2 = Prog().add(rd)
    fa = Prog(); fa.l = f.l[:56]; fb = Prog(); fb.l = f.l[56:]
    f2.add(fa)
    for k in range(4): f2.add(G2.r_pack(k))
    f2.add(fb)
    r2, rest = weave(r2, f2, per=2, pred=ismfma); p.add(r2)
    stamp(p, 'r')
    for k in range(4, 8): p.add(G2.r_pack(k))
    p.add(rest)
    p.add(G2.finish(cfg.get('sc', '')))
    stamp(p, 'fin')
    if diag:
        p('s_waitcnt vmcnt(0)'); stamp(p, 'end')
        if 'leak' in cfg:
            i = int(cfg['leak'])
            p(f'''s_waitcnt lgkmcnt(0)
            s_add_u32 s52, s{86+2*i}, 4000
            s_mov_b32 s3, 0
            LEAK:
            s_memrealtime s[54:55]
            s_add_u32 s3, s3, 1
            s_cmp_gt_u32 s3, 100000
            s_cbranch_scc1 EXIT
            s_waitcnt lgkmcnt(0)
            s_sub_u32 s54, s54, s52
            s_cmp_lt_i32 s54, 0
            s_cbranch_scc1 LEAK''')
        else: stamp_out(p, 0, 'EXIT')
    p('EXIT:'); return p
if __name__ == '__main__':
    diag = 'diag' in sys.argv[2:]
    cfg = dict(a.split('=') for a in sys.argv[2:] if '=' in a)
    st = {}
    if diag: STAMPS.extend(cfg.get('st', 'iss,g1,z,gelu,p2,g2,end').split(','))
    body = finalize(kernel(diag, cfg), st) + '    s_endpgm\n' + ''.join(tail) + 'CODE_END:\n'; print(st)
    if 'cyc' in sys.argv[1]: body = body.replace('s_memrealtime', 's_memtime')
    open(sys.argv[1], 'w').write(build_file([dict(name=NAME, grid=256, block=256, lds=163840, body=body, nfv=512, accum=256)], single=True))
```

```python
import sys, struct, math
sys.path.insert(0, 'gen')
from prog import *
from asmlib import build_file
def fx(x): return '0x%08x' % struct.unpack('<I', struct.pack('<f', x))[0]
def V(a, n=1): return f'v{a}' if n == 1 else f'v[{a}:{a+n-1}]'
def A(a, n=1): return f'a{a}' if n == 1 else f'a[{a}:{a+n-1}]'
X, WR, WI, W1, B1, W2, B2, OUT, DBG, WS = [f's[{4+4*i}:{7+4*i}]' for i in range(10)]
sW, sRB, sHC, sCP, sHC2, sBP, sCB, sXOR = range(44, 52)
H_OFF, Z_OFF, Y_OFF, FL_OFF = 0, 8 << 20, 10 << 20, 12 << 20
L_F, L_ZT, L_CS, L_XP = 135168, 151552, 159744, 135168
WST = 33792; W1OFF = [26624, 0, 11264]; XSOFF = [18432, 22528, 7168]; sLB = 66
STAMP_OFF = 128 << 20
M16 = 'v_mfma_f32_16x16x32_bf16'; M32 = 'v_mfma_f32_32x32x16_bf16'
CVT = 'v_cvt_pk_bf16_f32'

def prologue(p, exitl, diag, ne=3, pre=None):
    p(f's_cmp_ge_u32 s2, 256\ns_cbranch_scc1 {exitl}')
    if diag:
        for i in range(88, 102): p(f's_mov_b32 s{i}, 0')
        p('s_memrealtime s[86:87]')
    offs = [0, 8, 16, 32, 40, 48, 56, 64, 72, 80]
    size = [2097152, 2048*514, 2048*514, 512*3584, 3584, 1792*1024, 1024, 2097152, 256, 256 << 20]
    order = [0, 3, 9, 4, 5, 1, 2, 6, 7, 8]
    late = Prog()
    for k, i in enumerate(order): (p if k < ne else late)(f's_load_dwordx2 s[{4+4*i}:{5+4*i}], s[0:1], {offs[i]}')
    if pre: p.add(pre)
    p(f'''v_lshrrev_b32 v1, 6, v0
    v_and_b32 v0, 63, v0
    s_and_b32 s52, s2, 7
    v_readfirstlane_b32 s{sW}, v1
    s_lshr_b32 s53, s2, 3
    v_and_b32 v1, 15, v0
    v_lshrrev_b32 v2, 4, v0
    s_lshr_b32 s54, s52, 1
    s_and_b32 s55, s53, 3
    s_lshl2_add_u32 s{sRB}, s54, s55
    s_and_b32 s54, s52, 1
    s_lshr_b32 s{sCB}, s53, 2
    s_lshl3_add_u32 s{sHC}, s54, s{sCB}
    s_lshl2_add_u32 s{sBP}, s52, s55
    s_and_b32 s54, s53, 1
    s_lshl1_add_u32 s{sCP}, s52, s54
    s_lshr_b32 s{sHC2}, s53, 1
    s_mul_i32 s{sLB}, s{sW}, {WST}''')
    for k, i in enumerate(order): (p if k < 3 else late)(f's_mov_b32 s{6+4*i}, {size[i]}\ns_mov_b32 s{7+4*i}, 0x20000')
    return late

STAMPS = []
def stamp(p, name):
    if name in STAMPS:
        i = STAMPS.index(name) + 1
        p(f's_memrealtime s[{86+2*i}:{87+2*i}]')
    return p
def stamp_out(p, kidx, lab):
    p(f'''s_waitcnt vmcnt(0) lgkmcnt(0)
    s_cmp_lg_u32 s{sW}, 0
    s_cbranch_scc1 {lab}
    s_lshl_b32 s52, s2, 6
    s_add_u32 s52, s52, {STAMP_OFF + kidx*65536}
    v_mov_b32 v3, s52
    v_cmp_eq_u32 vcc, 0, v0
    s_and_saveexec_b64 s[54:55], vcc''')
    for i in range(8):
        p(f'v_mov_b32 v4, s{86+2*i}\nv_mov_b32 v5, s{87+2*i}\nbuffer_store_dwordx2 v[4:5], v3, {WS}, 0 offen offset:{8*i}\ns_nop 1')
    p('s_waitcnt vmcnt(0)')
def ismfma(x): return x.kind == 'mfma'
```

```python
from k_common import *
vDMA, vT, vF, vONE, vD32, vXO, vXR, vB1, vSG, vHID, vXF, vTMP = 5, 12, 16, 20, 24, 40, 44, 46, 48, 56, 112, 192
aX, aFR, aCS, aSUM, aSQ = 96, 128, 200, 228, 236
def g1_addr(p):
    p(f'''s_add_u32 s52, s{sRB}, s{sHC}
    s_and_b32 s52, s52, 3
    s_lshl2_add_u32 s53, s52, s{sW}
    s_lshl_b32 s{sXOR}, s53, 6
    s_lshl2_add_u32 s54, s{sRB}, s{sW}
    s_lshl_b32 s54, s54, 10
    s_and_b32 s55, s{sW}, 1
    s_lshl_b32 s55, s55, 2
    v_and_b32 v{vTMP}, 7, v0
    v_xor_b32 v{vTMP}, v{vTMP}, v2
    v_xor_b32 v{vTMP}, s55, v{vTMP}
    v_lshrrev_b32 v{vXO}, 3, v0
    v_lshlrev_b32 v{vXO}, 16, v{vXO}
    v_lshl_add_u32 v{vXO}, v{vTMP}, 4, v{vXO}
    v_add_u32 v{vXO}, s54, v{vXO}
    v_xor_b32 v{vXO+1}, 64, v{vXO}
    v_add_u32 v{vXO+2}, {16*65536-2048}, v{vXO}
    v_add_u32 v{vXO+3}, {24*65536-3072}, v{vXO+1}
    v_add_u32 v{vXO+1}, {8*65536-1024}, v{vXO+1}
    s_and_b32 s59, s{sXOR}, 0x380
    s_mul_i32 s55, s{sHC}, 224''')
    late = Prog()
    p('s_mul_i32 s52, s53, 114688\ns_add_u32 s82, s52, s55')
    for m in range(1, 4):
        late(f's_xor_b32 s52, s53, {4*m}\ns_mul_i32 s52, s52, 114688\ns_add_u32 s{82+m}, s52, s55')
    return late
def g1_dma_addr(q):
    p = Prog(); t = vTMP; d = vDMA + q
    if q == 0: p(f's_movk_i32 s76, 3360\ns_movk_i32 s77, 3584\ns_movk_i32 s78, -1792\nv_lshlrev_b32 v{t+3}, 8, v0\nv_lshlrev_b32 v{t+4}, 4, v0')
    else: p(f'v_add_u32 v{t+3}, {1<<14}, v{t+3}')
    if q == 4: p(f'v_add_u32 v{t+4}, 4096, v{t+4}')
    p(f'''v_mul_hi_u32_u24 v{t}, {4682<<8}, v{t+3}
    v_and_b32 v{t+1}, 4, v{t}
    v_mad_u32_u24 v{d}, v{t}, s76, v{t+4}
    v_mad_u32_u24 v{d}, v{t+1}, s77, v{d}''')
    if q & 3: p(f'v_and_b32 v{t+2}, 8, v{t}\nv_mad_i32_i24 v{d}, v{t+2}, s78, v{d}')
    return p
def g1_wl(m):
    L = []
    for q in range(7):
        g = Prog()
        if q in (0, 4): g(f's_add_u32 m0, s{sLB}, {W1OFF[m%3] + (q>>2)*4096}')
        g(f'buffer_load_dwordx4 v{vDMA+q}, {W1}, s{82+m} offen offset:{(q&3)*1024} lds', f'dma{m}')
        L.append(g)
    return L
def g1_xl(u):
    L = []
    for q in range(4):
        g = Prog()
        if q == 0: g(f's_add_u32 m0, s{sLB}, {XSOFF[u%3]}\ns_xor_b32 s57, s59, {u*128}')
        g(f'buffer_load_dwordx4 v{vXO+q}, {X}, s57 offen offset:{q*1024} lds', f'xd{u}')
        L.append(g)
    return L
def g1_consts():
    p = Prog(); t = vTMP
    p(f'''v_lshrrev_b32 v{t}, 1, v2
    v_and_b32 v{t+1}, 1, v2
    v_lshlrev_b32 v{t}, 4, v{t}
    v_lshl_add_u32 v{t}, v{t+1}, 2, v{t}
    v_lshrrev_b32 v{t+1}, 2, v1
    v_add_u32 v{t}, v{t}, v{t+1}
    v_mul_u32_u24 v{t}, 224, v{t}
    v_and_b32 v{t+1}, 3, v1
    v_lshl_add_u32 v{t}, v{t+1}, 3, v{t}
    v_lshlrev_b32 v{t+2}, 4, v0
    v_cmp_eq_u32 s[76:77], 1, v{t+1}
    v_cmp_eq_u32 s[78:79], 2, v{t+1}
    v_cmp_eq_u32 s[80:81], 3, v{t+1}''')
    for i in range(4):
        p(f'''s_xor_b32 s52, s{sW}, {i}
        s_mul_i32 s53, s52, {WST}
        s_lshl_b32 s52, s52, 11
        s_add_u32 s52, s52, {L_F}
        v_add_u32 v{vT+i}, s53, v{t}
        v_add_u32 v{vF+i}, s52, v{t+2}
        v_mov_b32 v{vONE+i}, 0x3f803f80''')
    p(f'''v_lshrrev_b32 v{t+3}, 1, v1
    v_xor_b32 v{t+3}, v{t+3}, v2
    v_lshlrev_b32 v{t+3}, 4, v{t+3}
    v_lshl_add_u32 v{t+3}, v1, 7, v{t+3}
    v_add_u32 v{vXR}, s{sLB}, v{t+3}
    v_xor_b32 v{vXR+1}, 64, v{vXR}
    v_and_b32 v{vSG}, 1, v1
    v_lshlrev_b32 v{vSG}, 31, v{vSG}
    v_xor_b32 v{vSG}, -1.0, v{vSG}''')
    k2f, g8, ang, c, s = t, t+1, t+2, t+4, t+12
    p(f'''s_lshl_b32 s52, s{sHC}, 4
    s_add_u32 s52, s52, 1
    v_add_u32 v{k2f}, s52, v1
    v_cvt_f32_u32 v{k2f}, v{k2f}
    v_mul_f32 v{k2f}, {fx(1/512)}, v{k2f}
    v_lshlrev_b32 v{g8}, 3, v2''')
    for m in range(2):
        p(f'''s_xor_b32 s52, s{sXOR}, {m*256}
        s_lshr_b32 s52, s52, 1
        v_add_u32 v{ang}, s52, v{g8}
        v_cvt_f32_u32 v{ang}, v{ang}
        v_mul_f32 v{ang}, v{ang}, v{k2f}''')
        for j in range(8):
            p(f'v_cos_f32 v{c+j}, v{ang}\nv_sin_f32 v{s+j}, v{ang}')
            if j < 7: p(f'v_add_f32 v{ang}, v{ang}, v{k2f}')
        for j in range(4):
            p(f'{CVT} v{t+20+j}, v{c+2*j}, v{c+2*j+1}\n{CVT} v{t+24+j}, -v{s+2*j}, -v{s+2*j+1}')
        p(f'ds_write_b128 v{vF}, {V(t+20,4)} offset:{m*8192}\nds_write_b128 v{vF}, {V(t+24,4)} offset:{m*8192+1024}')
    return p
def d32_consts():
    p = Prog(); t = vTMP
    lf, ang, c, s = t, t+1, t+4, t+12
    p(f'''v_cvt_f32_u32 v{lf}, v1
    v_cvt_f32_u32 v{ang}, v2
    v_mul_f32 v{lf}, {fx(1/32)}, v{lf}
    v_mul_f32 v{ang}, 4.0, v{ang}
    v_mul_f32 v{ang}, v{ang}, v{lf}''')
    for j in range(8):
        p(f'v_cos_f32 v{c+j}, v{ang}\nv_sin_f32 v{s+j}, v{ang}')
        if j == 3: p(f'v_fmamk_f32 v{ang}, v{lf}, {fx(13.0)}, v{ang}')
        elif j < 7: p(f'v_add_f32 v{ang}, v{ang}, v{lf}')
    for j in range(4):
        p(f'''{CVT} v{vD32+j}, v{c+2*j}, v{c+2*j+1}
        {CVT} v{vD32+4+j}, v{s+2*j}, v{s+2*j+1}
        {CVT} v{vD32+8+j}, v{c+2*j}, -v{c+2*j+1}
        {CVT} v{vD32+12+j}, v{s+2*j}, -v{s+2*j+1}''')
    return p
def b1_loads():
    g = Prog()
    g(f's_mul_i32 s58, s{sHC}, 224\nv_lshlrev_b32 v54, 3, v0\nbuffer_load_dwordx2 {V(vB1,2)}, v54, {B1}, s58 offen')
    return [g]
def g1_reads(st):
    m, i = st >> 2, st & 3; fb = aFR + (st & 1)*36; u = st >> 1
    L = []
    if not st & 1:
        for ii in range(2):
            for tt in range(2):
                L.append(Prog()(f'ds_read_b128 {A(aX+((u&1)*4+ii*2+tt)*4,4)}, v{vXR+ii} offset:{XSOFF[u%3]+tt*2048}'))
    for n in range(7):
        for hh in range(2):
            L.append(Prog()(f'ds_read_b64_tr_b16 {A(fb+4*n+2*hh,2)}, v{vT+i} offset:{W1OFF[m%3] + hh*1792 + n*32}'))
    for t in range(2):
        L.append(Prog()(f'ds_read_b128 {A(fb+28+4*t,4)}, v{vF+i} offset:{(m&1)*8192 + t*1024}'))
    return L
def g1_mfmas(st):
    m, i = st >> 2, st & 3; fb = aFR + (st & 1)*36
    p = Prog()
    xf = lambda tt: A(aX + ((st&3)*2+tt)*4, 4)
    c = lambda r: r if st else '0'
    for tt in range(2):
        p(f'{M16} {A(aSUM+4*tt,4)}, {V(vONE,4)}, {xf(tt)}, {c(A(aSUM+4*tt,4))}')
        p(f'{M16} {A(aSQ+4*tt,4)}, {xf(tt)}, {xf(tt)}, {c(A(aSQ+4*tt,4))}')
    for n in range(7):
        for tt in range(2):
            d = V(vHID + (2*n+tt)*4, 4)
            p(f'{M16} {d}, {A(fb+4*n,4)}, {xf(tt)}, {c(d)}')
        if i == 0: p(f'{M16} {A(aCS+4*n,4)}, {V(vONE,4)}, {A(fb+4*n,4)}, {c(A(aCS+4*n,4))}')
    for t in range(2):
        for tt in range(2):
            d = V(vXF + (2*t+tt)*4, 4)
            p(f'{M16} {d}, {xf(tt)}, {A(fb+28+4*t,4)}, {c(d)}')
    return p
def g1_main(sched, hook=None, lstart=4, levery=4, fill=None, xds={}, fs=0, fp=1):
    p = Prog(); t = vTMP + 24
    p.wvm('xd0'); p.wvm('dma0'); p.wds()
    stamp(p, 'd0')
    for g in g1_reads(0): p.add(g)
    for st in range(16):
        mf = g1_mfmas(st)
        stamp(p, f's{st}')
        pre = Prog(); pre.wds()
        if st < 15:
            rd = g1_reads(st+1)
            if (st & 3) == 3: pre.wvm(f'dma{(st+1)>>2}')
            if st & 1: pre.wvm(f'xd{(st+1)>>1}')
            if (st & 3) == 0 or st == 14:
                pre('s_barrier')
                if hook and st == 0: pre.add(hook)
            rd[0] = pre.add(rd[0])
            if len(rd) > 16: rd = [rd[0].add(rd[1]), rd[2].add(rd[3])] + rd[4:]
            mf, rest = weave(mf, rd, start=2, pred=ismfma); assert not rest.l
        ex = Prog()
        if st == 8:
            for k in range(16): ex(f'v_mul_f32 v{vXF+k}, v{vSG}, v{vXF+k}')
        if st == 13:
            ex(f's_lshl_b32 s52, s{sW}, 9\ns_add_u32 s52, s52, {L_CS}\nv_lshlrev_b32 v55, 2, v1\nv_add_u32 v55, s52, v55')
            for n in range(7): ex(f'ds_write_b32 v55, a{aCS+4*n} offset:{64*n}')
        if st == 14:
            ex(f'v_and_b32 v55, 31, v0\nv_lshlrev_b32 v55, 4, v55\nv_add_u32 v55, {L_CS}, v55')
            for k in range(4): ex(f'ds_read_b128 {V(vTMP+4*k,4)}, v55 offset:{512*k}')
            for k in range(2): ex(f'v_lshlrev_b32 v{vTMP+16+2*k}, 16, v{vB1+k}\nv_and_b32 v{vTMP+17+2*k}, 0xffff0000, v{vB1+k}')
        if st == 15:
            for k in range(4): ex(f'v_add_f32 v{vTMP+k}, v{vTMP+k}, v{vTMP+4+k}\nv_add_f32 v{vTMP+8+k}, v{vTMP+8+k}, v{vTMP+12+k}')
            for k in range(4): ex(f'v_add_f32 v{vTMP+k}, v{vTMP+k}, v{vTMP+8+k}')
            ex(f'v_lshlrev_b32 v54, 4, v0\nv_add_u32 v54, {L_CS+2560}, v54')
            ex(f'ds_write_b128 v55, {V(vTMP,4)} offset:2048\nds_write_b128 v54, {V(vTMP+16,4)}')
        for g in xds.get(st, []): ex.add(g)
        if fill is not None and fill.l and not ex.l and st >= fs: mf, fill = weave(mf, fill, per=fp, pred=ismfma)
        mf, rest = weave(mf, ex, start=3 if st < 15 else 0, pred=ismfma); mf.add(rest)
        ld = sched.get(st, []); ev = levery if len(ld) <= 4 else max(1, 18//len(ld))
        mf, rest = weave(mf, ld, start=lstart, every=ev, pred=ismfma); mf.add(rest)
        p.add(mf)
    assert fill is None or not fill.l, len(fill.l)
    return p
vRS, vNM = 12, 14
def g1_stats_z():
    p = Prog(); t = vTMP
    p(f'''v_lshrrev_b32 v{t}, 2, v1
    v_lshl_add_u32 v{t}, v{t}, 4, v1
    v_lshlrev_b32 v{t}, 2, v{t}
    v_lshlrev_b32 v{t+1}, 4, v2''')
    for tt in range(2):
        q = t+4+4*tt
        for r in range(4): p(f'v_accvgpr_read_b32 v{q+r}, a{aSQ+4*tt+r}')
        p(f'''v_cndmask_b32 v{q}, v{q}, v{q+1}, s[76:77]
        v_cndmask_b32 v{q}, v{q}, v{q+2}, s[78:79]
        v_cndmask_b32 v{q}, v{q}, v{q+3}, s[80:81]
        ds_bpermute_b32 v{q}, v{t}, v{q}
        v_accvgpr_read_b32 v{q+1}, a{aSUM+4*tt}
        v_mul_f32 v{q+1}, {fx(1/512)}, v{q+1}
        v_mul_f32 v{q+2}, v{q+1}, v{q+1}''')
    p(f'''s_cmp_eq_u32 s{sHC}, 15
    s_cselect_b32 s52, 15, 16
    v_cmp_eq_u32 vcc, s52, v1
    v_mov_b32 v{t+2}, {fx(2.0**-19)}
    v_mov_b32 v{t+3}, {fx(2.0**-20)}
    v_cndmask_b32 v{t+2}, v{t+2}, v{t+3}, vcc
    v_mul_f32 v{t+2}, v{t+2}, v{vSG}''')
    for tt in range(2):
        q = t+4+4*tt
        p(f'''v_mul_f32 v{q}, {fx(1/512)}, v{q}
        v_sub_f32 v{q}, v{q}, v{q+2}
        v_max_f32 v{q}, 0, v{q}
        v_add_f32 v{q+2}, {fx(1e-5)}, v{q}
        v_rsq_f32 v{q+2}, v{q+2}''')
        for r in range(4): p(f'ds_bpermute_b32 v{t+12+4*tt+r}, v{t+1}, v{q+2} offset:{4*r}')
    for tt in range(2):
        q = t+4+4*tt
        p(f'''v_mul_f32 v{q}, v{q}, v{q+2}
        v_fmaak_f32 v{q}, v{q}, v{q+2}, {fx(1e-5)}
        v_rsq_f32 v{q}, v{q}
        v_mul_f32 v{vRS+tt}, v{q}, v{q+2}
        v_mul_f32 v{vNM+tt}, v{vRS+tt}, -v{q+1}''')
    for k in range(0, 8, 2):
        p(f'v_pk_mul_f32 {V(t+12+k,2)}, {V(t+12+k,2)}, {V(t+2,2)} op_sel_hi:[1,0]')
    for tq in range(2):
        for k in range(0, 8, 2):
            p(f'v_pk_mul_f32 {V(vXF+8*tq+k,2)}, {V(vXF+8*tq+k,2)}, {V(t+12+k,2)}')
    br, bi, bn = t, t+4, t+8
    for k in range(4):
        p(f'''{CVT} v{br+k}, v{vXF+2*k}, v{vXF+2*k+1}
        {CVT} v{bi+k}, v{vXF+8+2*k}, v{vXF+8+2*k+1}
        {CVT} v{bn+k}, -v{vXF+2*k}, -v{vXF+2*k+1}''')
    z = vXF
    for ct in range(2):
        p(f'{M16} {V(z+8*ct,4)}, {V(vD32+8*ct,4)}, {V(br,4)}, 0\n{M16} {V(z+8*ct+4,4)}, {V(vD32+8*ct,4)}, {V(bi,4)}, 0')
    for ct in range(2):
        p(f'{M16} {V(z+8*ct,4)}, {V(vD32+8*ct+4,4)}, {V(bi,4)}, {V(z+8*ct,4)}\n{M16} {V(z+8*ct+4,4)}, {V(vD32+8*ct+4,4)}, {V(bn,4)}, {V(z+8*ct+4,4)}')
    p(f'''s_lshl2_add_u32 s52, s{sW}, {L_ZT}
    v_lshlrev_b32 v{t+12}, 10, v2
    v_lshl_add_u32 v{t+12}, v1, 4, v{t+12}
    v_add_u32 v{t+12}, s52, v{t+12}
    s_lshl_b32 s52, s{sW}, 11
    s_add_u32 s52, s52, {L_ZT}
    v_lshlrev_b32 v{t+13}, 4, v0
    v_add_u32 v{t+13}, s52, v{t+13}''')
    for ct in range(2):
        for r in range(4):
            p(f'{CVT} v{t+4*ct+r}, v{z+8*ct+r}, v{z+8*ct+4+r}\nds_write_b32 v{t+12}, v{t+4*ct+r} offset:{ct*4096+r*256}')
    p.wds(); p('s_barrier')
    q = Prog()
    q(f'ds_read_b128 {V(t,4)}, v{t+13}\nds_read_b128 {V(t+4,4)}, v{t+13} offset:1024')
    q(f'buffer_store_dwordx4 {V(t,4)}, v221, {WS}, 0 offen sc1\nbuffer_store_dwordx4 {V(t+4,4)}, v222, {WS}, 0 offen sc1', 'zst')
    return p, q
def z_poison():
    pre = Prog()
    pre(f'''s_lshl2_add_u32 s52, s{sHC}, s{sW}
    s_lshl_b32 s52, s52, 7
    s_add_u32 s52, s52, s{sRB}
    s_lshl_b32 s52, s52, 8
    s_add_u32 s52, s52, {Z_OFF}
    v_lshlrev_b32 v221, 12, v2
    v_lshl_add_u32 v221, v1, 4, v221
    v_add_u32 v221, s52, v221
    v_add_u32 v222, 16384, v221''')
    for k in range(4): pre(f'v_mov_b32 v{224+k}, -1')
    L = []
    for k in range(2): L.append(Prog()(f'buffer_store_dwordx4 v[224:227], v{221+k}, {WS}, 0 offen sc1', 'zpo'))
    return pre, L
def g1_gelu():
    K0 = -2*math.log2(math.e)*math.sqrt(2/math.pi); K1 = K0*0.044715
    t = 112
    pre = Prog()
    pre(f'''s_mov_b32 s74, {fx(K1)}
    v_mov_b32 v16, {fx(K0)}
    v_lshlrev_b32 v17, 4, v2
    v_add_u32 v17, {L_CS+2048}, v17
    v_lshlrev_b32 v18, 4, v0
    s_lshl2_add_u32 s52, s{sRB}, s{sW}
    s_mul_i32 s52, s52, 112
    s_mul_i32 s53, s{sHC}, 7
    s_add_u32 s52, s52, s53
    s_lshl_b32 s75, s52, 10
    s_add_u32 s57, s75, 4096
    ds_read_b128 {V(t,4)}, v17
    ds_read_b128 {V(t+8,4)}, v17 offset:512''')
    L = []
    for n in range(7):
        p = Prog(); cs = t + 4*(n & 1); bu = cs+8; u = 232; e = 236
        if n < 6: p(f'ds_read_b128 {V(t+4*((n+1)&1),4)}, v17 offset:{64*(n+1)}\nds_read_b128 {V(t+8+4*((n+1)&1),4)}, v17 offset:{512+64*(n+1)}')
        U, E = (232, 224), (236, 228); hh = vHID + 8*n
        T2 = [(tt, k) for tt in range(2) for k in (0, 2)]; T4 = [(tt, k) for tt in range(2) for k in range(4)]
        sel = ['op_sel_hi:[1,0,1]', 'op_sel:[0,1,0] op_sel_hi:[1,1,1]']
        for tt, k in T2: p(f'v_pk_fma_f32 {V(U[tt]+k,2)}, {V(cs+k,2)}, {V(vNM,2)}, {V(bu+k,2)} {sel[tt]}')
        for tt, k in T2: p(f'v_pk_fma_f32 {V(U[tt]+k,2)}, {V(hh+4*tt+k,2)}, {V(vRS,2)}, {V(U[tt]+k,2)} {sel[tt]}')
        for tt, k in T2: p(f'v_pk_mul_f32 {V(E[tt]+k,2)}, {V(U[tt]+k,2)}, {V(U[tt]+k,2)}')
        for tt, k in T2: p(f'v_pk_fma_f32 {V(E[tt]+k,2)}, {V(E[tt]+k,2)}, s[74:75], v[16:17] op_sel_hi:[1,0,0]')
        for tt, k in T2: p(f'v_pk_mul_f32 {V(E[tt]+k,2)}, {V(E[tt]+k,2)}, {V(U[tt]+k,2)}')
        for tt, k in T4: p(f'v_exp_f32 v{E[tt]+k}, v{E[tt]+k}')
        for tt, k in T2: p(f'v_pk_add_f32 {V(E[tt]+k,2)}, {V(E[tt]+k,2)}, 1.0 op_sel_hi:[1,0]')
        for tt, k in T4: p(f'v_rcp_f32 v{E[tt]+k}, v{E[tt]+k}')
        for tt, k in T2: p(f'v_pk_mul_f32 {V(U[tt]+k,2)}, {V(U[tt]+k,2)}, {V(E[tt]+k,2)}')
        for tt, k in T2: p(f'{CVT} v{hh+2*tt+k//2}, v{U[tt]+k}, v{U[tt]+k+1}')
        hh = vHID + 8*n
        p(f'v_permlane16_swap_b32 v{hh}, v{hh+2}\nv_permlane16_swap_b32 v{hh+1}, v{hh+3}')
        p(f'buffer_store_dwordx4 {V(hh,4)}, v18, {WS}, s{75 if n < 4 else 57} offen offset:{(n&3)*1024} sc1', 'hst')
        L.append(p)
    return pre, L
```

```python
from k_common import *
vACC, vG, vRING, vHC = 120, 56, 184, 40
vW2O, vW2R, vHO = 49, 3, 10
SLOT = [0, 1, 2, 3, 4, 5, 6, 7, 0, 1, 2, 3, 4, 5]
sROT = 65
def grp_soff(p, gam, dst, mul16):
    p(f's_add_u32 s{dst}, s{sROT}, {gam*2048}\ns_cmp_ge_u32 s{dst}, 28672\ns_cselect_b32 s53, 28672, 0\ns_sub_u32 s{dst}, s{dst}, s53')
    if mul16: p(f's_lshl_b32 s{dst}, s{dst}, 4')
import os
ROTX = {'0': f's_lshl1_add_u32 s52, s52, s{sCB}', '1': 's_lshl_b32 s52, s52, 1', '2': f's_xor_b32 s53, s{sCB}, 5\ns_lshl1_add_u32 s52, s52, s53'}[os.environ.get('ROT', '0')]
def w2_addr(t):
    p = Prog()
    p(f'''s_and_b32 s52, s{sBP}, 3
    {ROTX}
    s_cmp_ge_u32 s52, 7
    s_cselect_b32 s53, 7, 0
    s_sub_u32 s52, s52, s53
    s_lshl_b32 s{sROT}, s52, 12
    s_mul_i32 s52, s{sW}, {448*1024}
    s_lshl_b32 s53, s{sCB}, 7
    s_add_u32 s52, s52, s53
    v_lshrrev_b32 v{t}, 3, v0
    v_and_b32 v{t+1}, 7, v0
    v_and_b32 v{t+2}, 1, v2
    v_lshlrev_b32 v{t+2}, 2, v{t+2}
    v_xor_b32 v{t+1}, v{t+1}, v{t+2}
    v_lshlrev_b32 v{t}, 10, v{t}
    v_lshl_add_u32 v{t}, v{t+1}, 4, v{t}
    v_add_u32 v{vW2O}, s52, v{t}''')
    for q in range(1, 4): p(f'v_add_u32 v{vW2O+q}, {q*7168}, v{vW2O}')
    p(f'''v_lshrrev_b32 v{t}, 2, v1
    v_lshrrev_b32 v{t+1}, 1, v2
    v_lshl_add_u32 v{t+1}, v{t+1}, 3, v{t}
    v_lshlrev_b32 v{t+1}, 7, v{t+1}
    v_lshrrev_b32 v{t}, 1, v{t}
    s_and_b32 s52, s{sW}, 1
    v_xor_b32 v{t}, s52, v{t}
    v_lshl_add_u32 v{t+1}, v{t}, 6, v{t+1}
    v_and_b32 v{t}, 1, v1
    v_lshl_add_u32 v{t+1}, v{t}, 5, v{t+1}
    v_lshl_add_u32 v{t+1}, v{t+2}, 2, v{t+1}
    v_and_b32 v{t}, 2, v1
    v_lshl_add_u32 v{t+1}, v{t}, 2, v{t+1}
    v_add_u32 v{vW2R}, s{sLB}, v{t+1}
    v_xor_b32 v{vW2R+1}, 64, v{vW2R}''')
    return p
def h_addr(t):
    p = Prog()
    p(f'''s_lshr_b32 s52, s{sW}, 1
    s_lshl1_add_u32 s52, s{sBP}, s52
    s_xor_b32 s53, s52, 1
    s_mul_i32 s54, s{sW}, 28672
    s_mul_i32 s52, s52, 114688
    s_mul_i32 s53, s53, 114688
    s_add_u32 s52, s52, s54
    s_add_u32 s53, s53, s54
    v_lshlrev_b32 v{t}, 4, v0
    v_add_u32 v{vHO}, s52, v{t}
    v_add_u32 v{vHO+1}, s53, v{t}''')
    return p
def w2_dma(gam):
    L = []
    for q in range(4):
        g = Prog()
        if q == 0:
            grp_soff(g, gam, 67, True)
            g(f's_add_u32 m0, s{sLB}, {SLOT[gam]*4096}')
        g(f'buffer_load_dwordx4 v{vW2O+q}, {W2}, s67 offen offset:{q*1024} lds', f'w2d{gam}')
        L.append(g)
    return L
def w2_reads(gam):
    L = []
    for u in range(2):
        for ds in range(2):
            for hh in range(2):
                g = Prog()
                if not L: g.wvm(f'w2d{gam}')
                g(f'ds_read_b64_tr_b16 {A(((2*gam+u)*2+ds)*4+2*hh,2)}, v{vW2R+ds} offset:{SLOT[gam]*4096+u*2048+hh*512}')
                L.append(g)
    return L
NR = 16
ORD = [(k >> 1, k & 1) for k in range(48)] + [(t, 1) for t in range(24, 28)] + [(t, 0) for t in range(24, 28)]
def ring(k): return V(vRING + 4*((k + 10) % NR), 4)
def h_loads():
    L = []; seen = set()
    for k, (t, bs) in enumerate(ORD):
        gam, u = t >> 1, t & 1; so = 73 if gam & 1 else 68
        g = Prog()
        if gam not in seen: grp_soff(g, gam, so, False); seen.add(gam)
        g(f'buffer_load_dwordx4 {ring(k)}, v{vHO+bs}, {WS}, s{so} offen offset:{u*1024} sc1')
        L.append(g)
    return L
def b2_load():
    g = Prog()
    g(f'''s_lshr_b32 s52, s{sW}, 1
    s_lshl1_add_u32 s52, s{sBP}, s52
    s_lshl_b32 s52, s52, 10
    s_and_b32 s72, s{sW}, 1
    s_lshl1_add_u32 s72, s{sCB}, s72
    s_lshl_b32 s72, s72, 6
    s_add_u32 s71, s52, s72
    v_and_b32 v19, 3, v0
    v_bfe_u32 v9, v0, 3, 2
    v_lshl_add_u32 v19, v9, 2, v19
    v_and_b32 v9, 4, v0
    v_lshl_add_u32 v19, v9, 2, v19
    v_and_b32 v9, 32, v0
    v_lshl_add_u32 v19, v9, 5, v19
    v_lshlrev_b32 v19, 1, v19
    buffer_load_ushort v19, v19, {B2}, s72 offen''')
    return g
def b2_init():
    p = Prog()
    p('v_mov_b32 v248, v19\nv_mov_b32 v252, 0x3f80')
    for k in (249, 250, 251, 253, 254, 255): p(f'v_mov_b32 v{k}, 0')
    return p
def g2_mfmas():
    p = Prog()
    p(f'{M32} {V(vACC,16)}, v[248:251], v[252:255], 0')
    for k, (t, bs) in enumerate(ORD):
        for ds in ((1, 0) if k == 0 else (0, 1)):
            d = V(vACC + (2*bs+ds)*16, 16)
            p(f'{M32} {d}, {A((t*2+ds)*4,4)}, {ring(k)}, {d if t or bs+ds == 0 else 0}')
    return p
def g_consts(t):
    p = Prog()
    df, kf, ang, c, s = 20, 21, 22, 120, 124
    p(f'''s_lshl_b32 s54, s{sW}, 6
    s_add_u32 s54, s54, 1
    v_lshlrev_b32 v{kf}, 2, v2
    v_add_u32 v{kf}, s54, v{kf}
    v_cvt_f32_u32 v{kf}, v{kf}
    s_lshl_b32 s54, s{sCB}, 6
    v_add_u32 v{df}, s54, v1
    v_cvt_f32_u32 v{df}, v{df}
    v_mul_f32 v{df}, {fx(1/512)}, v{df}''')
    T, U, E = 23, 172, 152
    P = lambda dq, hq: 120 + 16*(dq & 1) + 8*hq
    def cvt(r, hq, dq):
        o = vG + (hq*4+dq)*4
        p(f'{CVT} v{o}, v{r}, v{r+1}\n{CVT} v{o+1}, v{r+2}, v{r+3}\n{CVT} v{o+2}, -v{r+4}, -v{r+5}\n{CVT} v{o+3}, -v{r+6}, -v{r+7}')
    p(f'v_mul_f32 v{T}, {fx(16.0)}, v{df}\nv_mul_f32 v{ang}, {fx(1/32)}, v{kf}\nv_cos_f32 v{T}, v{T}')
    for i in range(4):
        p(f'v_cos_f32 v{U+i}, v{ang}')
        if i < 3: p(f'v_add_f32 v{ang}, {fx(1/32)}, v{ang}')
    p(f'v_add_f32 v{T}, v{T}, v{T}')
    for dq in range(4):
        if dq < 2:
            p(f'v_mul_f32 v{ang}, v{df}, v{kf}')
            if dq == 0: p(f'v_pk_add_f32 {V(U,2)}, {V(U,2)}, {V(U,2)}\nv_pk_add_f32 {V(U+2,2)}, {V(U+2,2)}, {V(U+2,2)}')
        for hq in range(2):
            r = P(dq, hq)
            if dq < 2:
                for i in range(4):
                    p(f'v_cos_f32 v{r+i}, v{ang}\nv_sin_f32 v{r+4+i}, v{ang}')
                    if i < 3: p(f'v_add_f32 v{ang}, v{ang}, v{df}')
                    elif hq == 0: p(f'v_fmamk_f32 v{ang}, v{df}, {fx(13.0)}, v{ang}')
                    elif dq == 0: p(f'v_add_f32 v{df}, {fx(1/32)}, v{df}')
            else:
                for j in range(4): p(f'v_pk_fma_f32 {V(r+2*j,2)}, {V(U+2*(j&1),2)}, {V(P(dq+1,hq)+2*j,2)}, {V(r+2*j,2)} neg_lo:[{hq},0,1] neg_hi:[{hq},0,1]')
            cvt(r, hq, dq)
        for hq in (2, 3):
            x, y = (P(dq, 1), P(dq, 0)) if hq == 2 else (E, P(dq, 1))
            for j in range(4): p(f'v_pk_fma_f32 {V(E+2*j,2)}, {V(T-1,2)}, {V(x+2*j,2)}, {V(y+2*j,2)} op_sel:[1,0,0] op_sel_hi:[1,1,1] neg_lo:[{dq&1},0,1] neg_hi:[{dq&1},0,1]')
            cvt(E, hq, dq)
    return p
def h_consts(t):
    p = Prog()
    af, ang, c, s = t, t+1, t+2, t+3
    p(f'''v_and_b32 v{af}, 31, v0
    v_cvt_f32_u32 v{af}, v{af}
    v_lshrrev_b32 v{ang}, 5, v0
    v_cvt_f32_u32 v{ang}, v{ang}
    v_mul_f32 v{af}, {fx(1/32)}, v{af}
    v_add_f32 v{ang}, v{ang}, v{ang}
    v_mul_f32 v{ang}, v{ang}, v{af}''')
    for kk in range(2):
        for tq in range(4):
            pp = 8*(tq >> 1) + 4*kk + (tq & 1)
            if pp: p(f'v_fmamk_f32 v{c}, v{af}, {fx(float(pp))}, v{ang}\nv_sin_f32 v{s}, v{c}\nv_cos_f32 v{c}, v{c}')
            else:
                p(f'''v_sin_f32 v{s}, v{ang}
                v_and_b32 v{c}, 1, v0
                v_lshlrev_b32 v{c}, 31, v{c}
                v_xor_b32 v{c}, -1.0, v{c}
                v_cmp_gt_u32 s[76:77], 32, v0
                v_cndmask_b32 v{s}, v{s}, v{c}, s[76:77]
                v_cos_f32 v{c}, v{ang}''')
            p(f'{CVT} v{vHC+4*kk+tq}, v{c}, -v{s}')
    return p
def y_loads():
    L = []
    g = Prog()
    g(f'''s_lshl_b32 s52, s{sBP}, 16
    s_lshl_b32 s53, s{sW}, 13
    s_add_u32 s52, s52, s53
    s_add_u32 s69, s52, {Y_OFF}
    v_sub_u32 v12, 0, v2
    v_and_b32 v12, 3, v12
    v_xor_b32 v12, v12, v0
    v_lshlrev_b32 v12, 4, v12''')
    for b in range(2):
        for h2 in range(2):
            g(f's_add_u32 m0, s{sLB}, {16384 + (b*2+h2)*4096}\ns_add_u32 s70, s69, {b*32768 + h2*4096}')
            for q in range(4):
                g(f'buffer_load_dwordx4 v12, {WS}, s70 offen offset:{q*1024} sc1 lds', f'yd{b}{h2}')
                L.append(g); g = Prog()
    return L
def y_reads():
    L = []
    g = Prog()
    g(f'''v_lshrrev_b32 v12, 2, v1
    v_sub_u32 v12, 0, v12
    v_xor_b32 v12, v12, v2
    v_and_b32 v12, 3, v12
    v_lshlrev_b32 v12, 4, v12
    v_lshl_add_u32 v12, v1, 6, v12
    v_add_u32 v12, s{sLB}, v12''')
    for b in range(2):
        for hq in range(4):
            for rt in range(2):
                if (hq & 1) == 0 and rt == 0: g.wvm(f'yd{b}{hq>>1}')
                g(f'ds_read_b128 {A(((b*4+hq)*2+rt)*4,4)}, v12 offset:{16384 + ((b*4+hq)*2+rt)*1024}')
                L.append(g); g = Prog()
    return L
vXX = 20
def fin_loads():
    g = Prog()
    g(f'''v_lshrrev_b32 v14, 2, v0
    v_and_b32 v48, 3, v0
    v_lshlrev_b32 v14, 16, v14
    v_lshl_add_u32 v14, v48, 4, v14
    v_add_u32 v48, {16*65536-1024}, v14
    s_add_u32 m0, s{sLB}, 12288''')
    g(f'buffer_load_dwordx4 v14, {X}, s71 offen lds\nbuffer_load_dwordx4 v48, {X}, s71 offen offset:1024 lds', 'xfin')
    return g
def fin_xread():
    g = Prog()
    g.wvm('xfin')
    g(f'ds_read_b128 v[36:39], v54 offset:12288\nds_read_b128 v[248:251], v54 offset:12304')
    u = Prog()
    for k in range(8):
        r = 36 + k if k < 4 else 244 + k
        u(f'v_lshlrev_b32 v{vXX+2*k}, 16, v{r}\nv_and_b32 v{vXX+2*k+1}, 0xffff0000, v{r}')
    return g, u
def r_mfmas():
    p = Prog()
    for b in range(2):
        for hq in range(4):
            for rt in range(2):
                for dq in range(4):
                    d = V(vRING + ((b*4+dq)*2+rt)*4, 4)
                    p(f'{M16} {d}, {A(((b*4+hq)*2+rt)*4,4)}, {V(vG+(hq*4+dq)*4,4)}, {d if hq else 0}')
    return p
def g_part_writes():
    L = []
    g = Prog()
    for sl in (2, 3, 1):
        for k in range(4):
            g(f'ds_write_b128 v15, {V(vACC+16*sl+4*k,4)} offset:{(sl-1)*4096+k*1024}'); L.append(g); g = Prog()
    return L
def fin_addr(t):
    p = Prog()
    p(f'''v_and_b32 v{t}, 3, v0
    v_bfe_u32 v{t+1}, v0, 3, 2
    v_lshl_add_u32 v{t}, v{t+1}, 2, v{t}
    v_lshlrev_b32 v{t}, 4, v{t}
    v_bfe_u32 v{t+1}, v0, 2, 1
    v_lshl_add_u32 v{t}, v{t+1}, 10, v{t}
    v_lshrrev_b32 v{t+1}, 5, v0
    v_lshl_add_u32 v{t}, v{t+1}, 8, v{t}
    s_lshl_b32 s54, s{sW}, 11
    s_add_u32 s54, s54, 16384
    v_add_u32 v16, s54, v{t}
    v_add_u32 v3, {2*WST}, v16
    v_and_b32 v54, 31, v0
    v_and_b32 v{t}, 32, v0
    v_lshl_add_u32 v54, v54, 6, v{t}
    v_add_u32 v54, s{sLB}, v54
    v_lshlrev_b32 v{t}, 4, v0
    v_add_u32 v15, s{sLB}, v{t}''')
    for sl in range(1, 4):
        p(f's_xor_b32 s54, s{sW}, {sl}\ns_mul_i32 s54, s54, {WST}\ns_add_u32 s54, s54, {(sl-1)*4096}\nv_add_u32 v{16+sl}, s54, v{t}')
    return p
vBU, vE = 248, 36
def silu_part():
    rd = Prog(); f = Prog()
    for k in range(4):
        for sl in range(1, 4):
            rd(f'ds_read_b128 {V(vACC+16*sl+4*k,4)}, v{16+sl} offset:{k*1024}')
    f(f's_mov_b32 s74, {fx(-math.log2(math.e))}')
    a = vACC
    for k4 in range(0, 16, 4):
        for k in range(k4, k4+4): f(f'v_add_f32 v{a+16+k}, v{a+16+k}, v{a+32+k}\nv_add_f32 v{a+k}, v{a+k}, v{a+48+k}')
        for k in range(k4, k4+4): f(f'v_add_f32 v{a+k}, v{a+k}, v{a+16+k}')
        for k in range(4): f(f'v_mul_f32 v{vE+k}, s74, v{a+k4+k}')
        for k in range(4): f(f'v_exp_f32 v{vE+k}, v{vE+k}')
        for k in range(4): f(f'v_add_f32 v{vE+k}, 1.0, v{vE+k}')
        for k in range(4): f(f'v_rcp_f32 v{vE+k}, v{vE+k}')
        for k in range(4): f(f'v_mul_f32 v{a+k4+k}, v{a+k4+k}, v{vE+k}')
    return rd, f
def r_pack(k):
    p = Prog(); r = vRING + 8*k
    for j in range(4): p(f'{CVT} v{r+j}, v{r+2*j}, v{r+2*j+1}')
    p(f'ds_write_b128 v15, {V(r,4)} offset:{16384+1024*k}')
    return p
def finish(sc):
    p = Prog()
    p.wds(); stamp(p, 'fb0'); p('s_barrier'); stamp(p, 'fb1')
    for ws in range(4):
        for kk in range(2):
            p(f'ds_read_b128 {A((ws*2+kk)*4,4)}, v{3 if ws >= 2 else 16} offset:{(ws&1)*WST+kk*512}')
    S = vG
    for k in range(8): p(f'{M32} {V(S,16)}, {A(4*k,4)}, {V(vHC+4*(k&1),4)}, {V(S,16) if k else 0}')
    o = vACC + 16
    for k in range(0, 16, 2):
        p(f'v_pk_fma_f32 {V(S+k,2)}, {V(S+k,2)}, {V(vACC+k,2)}, {V(vXX+k,2)}')
        p(f'{CVT} v{o+k//2}, v{S+k}, v{S+k+1}')
        if k in (6, 14): p(f'ds_write_b128 v54, {V(o+(k>>3)*4,4)} offset:{12288+(k>>3)*16}')
    p.wds()
    p(f'ds_read_b128 {V(o,4)}, v15 offset:12288\nds_read_b128 {V(o+4,4)}, v15 offset:13312')
    p(f'buffer_store_dwordx4 {V(o,4)}, v14, {OUT}, s71 offen {sc}\nbuffer_store_dwordx4 {V(o+4,4)}, v48, {OUT}, s71 offen offset:1024 {sc}')
    return p
def w2_l2pf():
    L = []
    g = Prog()
    g(f'''s_mul_i32 s52, s{sW}, {448*1024}
    s_lshl_b32 s53, s{sCB}, 7
    s_add_u32 s52, s52, s53
    v_lshrrev_b32 v221, 2, v0
    v_lshlrev_b32 v221, 10, v221
    v_add_u32 v221, s52, v221
    v_add_u32 v222, 16384, v221''')
    pre = g
    for k in range(4):
        g = Prog()
        if not k & 1: grp_soff(g, 2 + (k >> 1), 58, True)
        g(f'buffer_load_dword v{224+k}, v{221+(k&1)}, {W2}, s58 offen'); L.append(g)
    return pre, L
```

```python
from k_common import *
import k_g1 as G1, k_p2 as P2, k_g2 as G2
NAME = 'recurrent_scan__spectral_gfnet__mixer_channel_mlp__prompt_kernel'
ZF, HF, YF = FL_OFF, FL_OFF + 4096, FL_OFF + 8192
vOOB, vPA, vP, vONEI = 5, 6, 7, 8
tail = []
def poll_issue(srd, va, so): return Prog()(f'buffer_load_dword v{vP}, v{va}, {srd}, {so} offen sc1')
def poll_check(name, srd, va, so):
    p = Prog()
    p(f'v_cmp_ne_u32 vcc, 1, v{vP}\ns_cbranch_vccnz SPIN_{name}\nBACK_{name}:')
    tail.append(f'''SPIN_{name}:
    s_mov_b32 s3, 0
LOOP_{name}:
    buffer_load_dword v{vP}, v{va}, {srd}, {so} offen sc1
    s_add_u32 s3, s3, 1
    s_cmp_gt_u32 s3, 20000
    s_cbranch_scc1 BACK_{name}
    s_waitcnt vmcnt(0)
    v_cmp_ne_u32 vcc, 1, v{vP}
    s_cbranch_vccnz LOOP_{name}
    s_branch BACK_{name}
''')
    return p
def flag_store(tag, scalc):
    p = Prog(); p(scalc); p.wvm(tag)
    p(f'buffer_store_dword v{vONEI}, v{vOOB}, {WS}, s56 offen sc1')
    return p
def w2rd(gam):
    L = G2.w2_reads(gam)
    for g in L: g.l[-1].tag = f'w2r{gam}'
    return L
def w2ld(gam):
    L = G2.w2_dma(gam)
    prev = [k for k in range(gam) if G2.SLOT[k] == G2.SLOT[gam]]
    if prev:
        g = Prog(); g.wdsn(f'w2r{prev[-1]}'); L[0] = g.add(L[0])
    return L
def flat(L):
    p = Prog()
    for g in L: p.add(g)
    return p
isvalu = lambda x: x.kind == 'valu'
def kernel(diag, cfg):
    p = Prog(); late0 = prologue(p, 'EXIT', diag, int(cfg.get('ne', 3))); pf = Prog()
    if 'xcb' in cfg: p(f's_xor_b32 s{sCB}, s{sCB}, {cfg["xcb"]}')
    if 'xhc' in cfg: p(f's_xor_b32 s{sHC}, s{sHC}, {cfg["xhc"]}')
    if 1:
        pf(f'''s_getpc_b64 s[52:53]
        PCREF:
        s_lshl_b32 s54, s{sW}, 13
        v_lshlrev_b32 v230, 7, v0
        v_add_u32 v230, s54, v230
        v_min_u32 v230, CODE_END-PCREF, v230
        v_mov_b32 v231, s53
        v_add_co_u32 v230, vcc, s52, v230
        v_addc_co_u32 v231, vcc, 0, v231, vcc
        global_load_dword v223, v[230:231], off''')
    pfp = cfg.get('pf', '0'); da = int(cfg.get('da', 0))
    if pfp == '0': p.add(pf)
    late1 = G1.g1_addr(p)
    for q in range(da): p.add(G1.g1_dma_addr(q))
    c = Prog()
    c(f's_or_b32 s52, s2, s{sW}\nv_add_u32 v53, s52, v0\nv_lshlrev_b32 v53, 8, v53\nv_mov_b32 v55, 1')
    xl, wl = G1.g1_xl, G1.g1_wl
    x1 = Prog(); wpre, wl2 = P2.p2_wloads(); ppre, zpo = G1.z_poison()
    for g in xl(1): x1.add(g)
    grp = {'g': G1.g1_consts(), 'd': G1.d32_consts(), 'w': G2.w2_addr(212), 'f': P2.p2_fwd_consts(212), 'x': x1, 'W': wpre, 'p': ppre}
    ho, po = cfg.get('ho', ''), cfg.get('po', 'gdwxfWp'); assert sorted(ho+po) == sorted('gdwxfWp') and 'x' in po and 'g' in po
    fill = Prog()
    for k in ho: fill.add(grp[k])
    p(f'''s_cmp_lg_u32 s2, 0
    s_cbranch_scc1 NOZERO
    v_mov_b32 v224, 0
    v_mov_b32 v225, 0
    v_mov_b32 v226, 0
    v_mov_b32 v227, 0
    s_mul_i32 s52, s{sW}, 3072
    s_add_u32 s52, s52, {FL_OFF}
    v_lshlrev_b32 v228, 4, v0''')
    for k in range(3): p(f'buffer_store_dwordx4 v[224:227], v228, {WS}, s52 offen offset:{1024*k} sc1')
    p('NOZERO:\ns_waitcnt lgkmcnt(0)')
    stamp(p, 'ka')
    for g in xl(0): p.add(g)
    if pfp == '1': p.add(late1).add(pf)
    for q, g in enumerate(wl(0)):
        if q >= da: p.add(G1.g1_dma_addr(q))
        p.add(g)
    stamp(p, 'l0')
    if pfp != '1': p.add(late1)
    if pfp == '2': p.add(pf)
    p.add(late0).add(P2.p2_ids())
    for k in po: p.add(grp[k])
    p.add(c)
    stamp(p, 'c1')
    w1, w2, w3 = wl(1), wl(2), wl(3)
    npre = int(cfg.get('npre', 4))
    for g in w1[:npre]: p.add(g)
    stamp(p, 'iss')
    hook = Prog()(f'buffer_store_dword v55, v53, {DBG}, 0 offen sc1')
    go = Prog()(f'v_mov_b32 v{vPA}, 0\nv_mov_b32 v{vONEI}, 1\nv_min_u32 v{vOOB}, 1, v0\nv_lshlrev_b32 v{vOOB}, 28, v{vOOB}').add(poll_issue(DBG, vPA, 0))
    sched = {0: w1[npre:] + xl(2), 1: xl(3), 2: w2[:4], 3: w2[4:] + xl(4)[:2], 4: xl(4)[2:] + xl(5), 5: w3[:4], 6: w3[4:] + G1.b1_loads(), 7: xl(6), 8: xl(7) + [go]}
    for k in range(16): sched.setdefault(k, [])
    wls, wrs = cfg.get('wl', '9bdf'), cfg.get('wr', '')
    for k, st in enumerate(wls): sched[int(st, 16)] += w2ld(k)
    sched[int(cfg.get('zp', 3))] += zpo
    if cfg.get('wpf', '6') != '': sched[int(cfg.get('wpf', '6'))] += [Prog()(f'buffer_load_ushort v229, v228, {WR}, 0 offen\nbuffer_load_ushort v230, v228, {WI}, 0 offen')]
    wg1 = cfg.get('wg1', '')
    for k, st in enumerate(wg1): sched[int(st, 16)].append(wl2[k])
    zfl = poll_check('go', DBG, vPA, 0).add(flag_store('zpo', f's_lshl2_add_u32 s56, s{sHC}, s{sW}\ns_lshl4_add_u32 s56, s56, s{sRB}\ns_lshl2_add_u32 s56, s56, {ZF}'))
    sched[int(cfg.get('zf', 12))].insert(0, zfl)
    xds = {}
    for k, st in enumerate(wrs): xds[int(st, 16)] = xds.get(int(st, 16), []) + w2rd(k)
    p.add(G1.g1_main(sched, hook=hook, xds=xds, fill=fill, fs=int(cfg.get('fs', 0)), fp=int(cfg.get('fp', 1))))
    stamp(p, 'g1')
    a, b = G1.g1_stats_z()
    p.add(a).add(b)
    stamp(p, 'z')
    pre, Lg = G1.g1_gelu(); p.add(pre)
    zpi = Prog()(f's_lshr_b32 s60, s62, 3\ns_lshl2_add_u32 s60, s{sHC2}, s60\ns_lshl_b32 s60, s60, 6\ns_add_u32 s60, s60, {ZF}\nv_lshlrev_b32 v{vPA}, 2, v1').add(poll_issue(WS, vPA, 's60'))
    zn = int(cfg.get('zn', 6))
    fills = {k: [] for k in range(7)}
    gls, grs = cfg.get('gl', '0011'), cfg.get('gr', '001256')
    for k, st in enumerate(gls): fills[int(st)] += w2ld(len(wls) + k)
    for k, st in enumerate(grs): fills[int(st)] += w2rd(len(wrs) + k)
    for k, st in enumerate(cfg.get('wat', '22334455')): fills[int(st)].append(wl2[len(wg1)+k])
    assert len(wg1) + len(cfg.get('wat', '22334455')) == 8
    fills[0].append(G2.b2_load())
    nl, nr = len(wls) + len(gls), len(wrs) + len(grs)
    fills[0].insert(0, zpi)
    zl = poll_check('z', WS, vPA, 's60').add(P2.p2_zloads()); stamp(zl, 'zpoll'); tail.append(P2.z_retry())
    if zn < 7: fills[zn].append(zl)
    for n, g in enumerate(Lg):
        f = fills.get(n, [])
        g, rest = weave(g, f, start=0, every=max(1, 48//max(1, len(f))), pred=isvalu); p.add(g).add(rest)
    stamp(p, 'gelu')
    if zn == 7: p.add(zl)
    gc = G2.g_consts(0); hc = G2.h_consts(232)
    def take(n):
        q = Prog(); q.l = gc.l[:n]; gc.l = gc.l[n:]; return q
    wrest = [g for k in range(nl, 14) for g in w2ld(k)]; n1, n2, n3 = [int(cfg.get(k, d)) for k, d in (('n1', 0), ('n2', 16), ('n3', 32))]
    c, rest = weave(P2.p2_inv_consts(), wrest[:n1], every=8, pred=isvalu); p.add(c).add(rest).add(G2.h_addr(224))
    hfl = flag_store('hst', f's_lshl2_add_u32 s56, s{sRB}, s{sW}\ns_lshl4_add_u32 s56, s56, s{sHC}\ns_lshl2_add_u32 s56, s56, {HF}')
    p.add(hfl)
    stamp(p, 'hfl')
    na, nb = int(cfg.get('na', 0)), int(cfg.get('nb', 8))
    c, rest = weave(hc, wrest[n1:n1+na], every=max(1, 40//max(1, na)), pred=isvalu); p.add(c).add(rest); n1 += na
    c, rest = weave(P2.p2_fwd(), wrest[n1:n1+nb], every=max(1, 16//max(1, nb)), pred=ismfma); assert not rest.l; p.add(c); n1 += nb
    n2 = max(n2, n1)
    stamp(p, 'fwd')
    hl = G2.h_loads()
    p.add(P2.p2_inv('CP0', G2.b2_init(), Prog()))
    stamp(p, 'p2')
    hpi = Prog()(f's_lshl_b32 s60, s{sBP}, 7\ns_lshl4_add_u32 s60, s{sW}, s60\ns_add_u32 s60, s60, {HF}\nv_and_b32 v{vPA}, 0x13, v0\nv_lshlrev_b32 v{vPA}, 2, v{vPA}')
    hpi.add(poll_issue(WS, vPA, 's60'))
    hp = int(cfg.get('hp', 4)); seg = wrest[n1:n2]
    if hp >= 0: seg.insert(hp, hpi)
    g1 = int(cfg.get('g1', 70)); c, rest = weave(take(g1), seg, every=max(1, (g1-6)//max(1, len(seg))), pred=isvalu); p.add(c).add(rest)
    yfl = flag_store('yst', f's_lshl4_add_u32 s56, s{sW}, s{sHC2}\ns_lshl4_add_u32 s56, s56, s{sCP}\ns_lshl2_add_u32 s56, s56, {YF}')
    p.add(yfl); stamp(p, 'yfl')
    if hp < 0: p.add(hpi)
    g2 = int(cfg.get('g2', 40)); c, rest = weave(take(g2), wrest[n2:n3], every=max(1, g2//max(1, n3-n2)), pred=isvalu); p.add(c).add(rest)
    p.add(poll_check('h', WS, vPA, 's60')); stamp(p, 'hpoll')
    wr = [g for k in range(nr, 14) for g in w2rd(k)]
    nh = int(cfg.get('nh', 8))
    p.add(flat(hl[:nh]))
    c, rest = weave(gc, hl[nh:16] + wrest[n3:], every=8, pred=isvalu); p.add(c).add(rest)
    stamp(p, 'gc2')
    ypi = Prog()(f's_lshr_b32 s60, s{sBP}, 3\ns_lshl2_add_u32 s60, s60, s{sW}\ns_lshl_b32 s60, s60, 8\ns_add_u32 s60, s60, {YF}\nv_lshlrev_b32 v{vPA}, 2, v0').add(poll_issue(WS, vPA, 's60'))
    yl = G2.y_loads(); yl[0] = stamp(poll_check('y', WS, vPA, 's60'), 'ypoll').add(yl[0])
    hl[int(cfg.get('yp', 42))].add(ypi)
    hl[34].wdsn('w2r13'); hl[34].add(G2.fin_loads())
    xr, xu = G2.fin_xread(); hl[52].add(xr)
    yr = G2.y_reads(); gw = G2.g_part_writes()
    m = G2.g2_mfmas()
    m, rest = weave(m, wr, start=int(cfg.get('rs', 1)), per=2, pred=ismfma); assert not rest.l
    m, rest = weave(m, G2.fin_addr(36), start=40, per=2, pred=ismfma); assert not rest.l
    m, rest = weave(m, xu, start=78, per=2, pred=ismfma); assert not rest.l
    m, rest = weave(m, gw[:8], start=106, per=2, pred=ismfma); assert not rest.l
    m, rest = weave(m, hl[16:], start=1, every=2, pred=ismfma); assert not rest.l
    m, rest = weave(m, yl, start=81+int(cfg.get('yd', 0)), pred=ismfma); assert not rest.l
    p.add(m)
    stamp(p, 'g2')
    for g in yr[:4]: p.add(g)
    rm = G2.r_mfmas(); nr1 = int(cfg.get('r1', 16))
    r1 = Prog(); r1.l = rm.l[:nr1]; r2 = Prog(); r2.l = rm.l[nr1:]
    f1 = gw[8:] + yr[4:]
    r1, rest = weave(r1, f1, pred=ismfma); p.add(r1).add(rest)
    p.wds(); p('s_barrier')
    rd, f = G2.silu_part()
    f2 = Prog().add(rd)
    fa = Prog(); fa.l = f.l[:56]; fb = Prog(); fb.l = f.l[56:]
    f2.add(fa)
    for k in range(4): f2.add(G2.r_pack(k))
    f2.add(fb)
    r2, rest = weave(r2, f2, per=2, pred=ismfma); p.add(r2)
    stamp(p, 'r')
    for k in range(4, 8): p.add(G2.r_pack(k))
    p.add(rest)
    p.add(G2.finish(cfg.get('sc', '')))
    stamp(p, 'fin')
    if diag:
        p('s_waitcnt vmcnt(0)'); stamp(p, 'end')
        if 'leak' in cfg:
            i = int(cfg['leak'])
            p(f'''s_waitcnt lgkmcnt(0)
            s_add_u32 s52, s{86+2*i}, 4000
            s_mov_b32 s3, 0
            LEAK:
            s_memrealtime s[54:55]
            s_add_u32 s3, s3, 1
            s_cmp_gt_u32 s3, 100000
            s_cbranch_scc1 EXIT
            s_waitcnt lgkmcnt(0)
            s_sub_u32 s54, s54, s52
            s_cmp_lt_i32 s54, 0
            s_cbranch_scc1 LEAK''')
        else: stamp_out(p, 0, 'EXIT')
    p('EXIT:'); return p
if __name__ == '__main__':
    diag = 'diag' in sys.argv[2:]
    cfg = dict(a.split('=') for a in sys.argv[2:] if '=' in a)
    st = {}
    if diag: STAMPS.extend(cfg.get('st', 'iss,g1,z,gelu,p2,g2,end').split(','))
    body = finalize(kernel(diag, cfg), st) + '    s_endpgm\n' + ''.join(tail) + 'CODE_END:\n'; print(st)
    if 'cyc' in sys.argv[1]: body = body.replace('s_memrealtime', 's_memtime')
    open(sys.argv[1], 'w').write(build_file([dict(name=NAME, grid=256, block=256, lds=163840, body=body, nfv=512, accum=256)], single=True))
```

```python
from k_common import *
import k_g1 as G1, k_p2 as P2, k_g2 as G2
NAME = 'recurrent_scan__spectral_gfnet__mixer_channel_mlp__prompt_kernel'
ZF, HF, YF = FL_OFF, FL_OFF + 4096, FL_OFF + 8192
vOOB, vPA, vP, vONEI = 5, 6, 7, 8
tail = []
def poll_issue(srd, va, so): return Prog()(f'buffer_load_dword v{vP}, v{va}, {srd}, {so} offen sc1')
def poll_check(name, srd, va, so):
    p = Prog()
    p(f'v_cmp_ne_u32 vcc, 1, v{vP}\ns_cbranch_vccnz SPIN_{name}\nBACK_{name}:')
    tail.append(f'''SPIN_{name}:
    s_mov_b32 s3, 0
LOOP_{name}:
    buffer_load_dword v{vP}, v{va}, {srd}, {so} offen sc1
    s_add_u32 s3, s3, 1
    s_cmp_gt_u32 s3, 20000
    s_cbranch_scc1 BACK_{name}
    s_waitcnt vmcnt(0)
    v_cmp_ne_u32 vcc, 1, v{vP}
    s_cbranch_vccnz LOOP_{name}
    s_branch BACK_{name}
''')
    return p
def flag_store(tag, scalc):
    p = Prog(); p(scalc); p.wvm(tag)
    p(f'buffer_store_dword v{vONEI}, v{vOOB}, {WS}, s56 offen sc1')
    return p
def w2rd(gam):
    L = G2.w2_reads(gam)
    for g in L: g.l[-1].tag = f'w2r{gam}'
    return L
def w2ld(gam):
    L = G2.w2_dma(gam)
    prev = [k for k in range(gam) if G2.SLOT[k] == G2.SLOT[gam]]
    if prev:
        g = Prog(); g.wdsn(f'w2r{prev[-1]}'); L[0] = g.add(L[0])
    return L
def flat(L):
    p = Prog()
    for g in L: p.add(g)
    return p
isvalu = lambda x: x.kind == 'valu'
def kernel(diag, cfg):
    p = Prog(); pf = Prog(); pre = None
    if cfg.get('pf', '3') == '3':
        pre = Prog()('s_getpc_b64 s[52:53]\nPCREF:\nv_lshlrev_b32 v230, 7, v0\nv_min_u32 v230, CODE_END-PCREF, v230\nv_mov_b32 v231, s53\nv_add_co_u32 v230, vcc, s52, v230\nv_addc_co_u32 v231, vcc, 0, v231, vcc\nglobal_load_dword v223, v[230:231], off')
    late0 = prologue(p, 'EXIT', diag, int(cfg.get('ne', 3)), pre)
    if 'xcb' in cfg: p(f's_xor_b32 s{sCB}, s{sCB}, {cfg["xcb"]}')
    if 'xhc' in cfg: p(f's_xor_b32 s{sHC}, s{sHC}, {cfg["xhc"]}')
    if 1:
        pf(f'''s_getpc_b64 s[52:53]
        PCREF:
        s_lshl_b32 s54, s{sW}, 13
        v_lshlrev_b32 v230, 7, v0
        v_add_u32 v230, s54, v230
        v_min_u32 v230, CODE_END-PCREF, v230
        v_mov_b32 v231, s53
        v_add_co_u32 v230, vcc, s52, v230
        v_addc_co_u32 v231, vcc, 0, v231, vcc
        global_load_dword v223, v[230:231], off''')
    pfp = cfg.get('pf', '3'); da = int(cfg.get('da', 0))
    if pfp == '0': p.add(pf)
    late1 = G1.g1_addr(p)
    for q in range(da): p.add(G1.g1_dma_addr(q))
    c = Prog()
    c(f's_or_b32 s52, s2, s{sW}\nv_add_u32 v53, s52, v0\nv_lshlrev_b32 v53, 8, v53\nv_mov_b32 v55, 1')
    xl, wl = G1.g1_xl, G1.g1_wl
    x1 = Prog(); wpre, wl2 = P2.p2_wloads(); ppre, zpo = G1.z_poison()
    for g in xl(1): x1.add(g)
    grp = {'g': G1.g1_consts(), 'd': G1.d32_consts(), 'w': G2.w2_addr(212), 'f': P2.p2_fwd_consts(212), 'x': x1, 'W': wpre, 'p': ppre}
    ho, po = cfg.get('ho', ''), cfg.get('po', 'gdwxfWp'); assert sorted(ho+po) == sorted('gdwxfWp') and 'x' in po and 'g' in po
    fill = Prog()
    for k in ho: fill.add(grp[k])
    p(f'''s_cmp_lg_u32 s2, 0
    s_cbranch_scc1 NOZERO
    v_mov_b32 v224, 0
    v_mov_b32 v225, 0
    v_mov_b32 v226, 0
    v_mov_b32 v227, 0
    s_mul_i32 s52, s{sW}, 3072
    s_add_u32 s52, s52, {FL_OFF}
    v_lshlrev_b32 v228, 4, v0''')
    for k in range(3): p(f'buffer_store_dwordx4 v[224:227], v228, {WS}, s52 offen offset:{1024*k} sc1')
    p('NOZERO:\ns_waitcnt lgkmcnt(0)')
    stamp(p, 'ka')
    for g in xl(0): p.add(g)
    if pfp == '1': p.add(late1).add(pf)
    for q, g in enumerate(wl(0)):
        if q >= da: p.add(G1.g1_dma_addr(q))
        p.add(g)
    stamp(p, 'l0')
    if pfp != '1': p.add(late1)
    if pfp == '2': p.add(pf)
    p.add(late0).add(P2.p2_ids())
    for k in po: p.add(grp[k])
    p.add(c)
    stamp(p, 'c1')
    w1, w2, w3 = wl(1), wl(2), wl(3)
    npre = int(cfg.get('npre', 4))
    for g in w1[:npre]: p.add(g)
    stamp(p, 'iss')
    hook = Prog()(f'buffer_store_dword v55, v53, {DBG}, 0 offen sc1')
    go = Prog()(f'v_mov_b32 v{vPA}, 0\nv_mov_b32 v{vONEI}, 1\nv_min_u32 v{vOOB}, 1, v0\nv_lshlrev_b32 v{vOOB}, 28, v{vOOB}').add(poll_issue(DBG, vPA, 0))
    sched = {0: w1[npre:] + xl(2), 1: xl(3), 2: w2[:4], 3: w2[4:] + xl(4)[:2], 4: xl(4)[2:] + xl(5), 5: w3[:4], 6: w3[4:] + G1.b1_loads(), 7: xl(6), 8: xl(7) + [go]}
    for k in range(16): sched.setdefault(k, [])
    wls, wrs = cfg.get('wl', '9bdf'), cfg.get('wr', '')
    for k, st in enumerate(wls): sched[int(st, 16)] += w2ld(k)
    sched[int(cfg.get('zp', 3))] += zpo
    if cfg.get('wpf', '6') != '': sched[int(cfg.get('wpf', '6'))] += [Prog()(f'buffer_load_ushort v229, v228, {WR}, 0 offen\nbuffer_load_ushort v230, v228, {WI}, 0 offen')]
    wg1 = cfg.get('wg1', '')
    for k, st in enumerate(wg1): sched[int(st, 16)].append(wl2[k])
    zfl = poll_check('go', DBG, vPA, 0).add(flag_store('zpo', f's_lshl2_add_u32 s56, s{sHC}, s{sW}\ns_lshl4_add_u32 s56, s56, s{sRB}\ns_lshl2_add_u32 s56, s56, {ZF}'))
    sched[int(cfg.get('zf', 12))].insert(0, zfl)
    xds = {}
    for k, st in enumerate(wrs): xds[int(st, 16)] = xds.get(int(st, 16), []) + w2rd(k)
    p.add(G1.g1_main(sched, hook=hook, xds=xds, fill=fill, fs=int(cfg.get('fs', 0)), fp=int(cfg.get('fp', 1))))
    stamp(p, 'g1')
    a, b = G1.g1_stats_z()
    p.add(a).add(b)
    stamp(p, 'z')
    pre, Lg = G1.g1_gelu(); p.add(pre)
    zpi = Prog()(f's_lshr_b32 s60, s62, 3\ns_lshl2_add_u32 s60, s{sHC2}, s60\ns_lshl_b32 s60, s60, 6\ns_add_u32 s60, s60, {ZF}\nv_lshlrev_b32 v{vPA}, 2, v1').add(poll_issue(WS, vPA, 's60'))
    zn = int(cfg.get('zn', 6))
    fills = {k: [] for k in range(7)}
    gls, grs = cfg.get('gl', '0011'), cfg.get('gr', '001256')
    for k, st in enumerate(gls): fills[int(st)] += w2ld(len(wls) + k)
    for k, st in enumerate(grs): fills[int(st)] += w2rd(len(wrs) + k)
    for k, st in enumerate(cfg.get('wat', '22334455')): fills[int(st)].append(wl2[len(wg1)+k])
    assert len(wg1) + len(cfg.get('wat', '22334455')) == 8
    fills[0].append(G2.b2_load())
    nl, nr = len(wls) + len(gls), len(wrs) + len(grs)
    fills[0].insert(0, zpi)
    zl = poll_check('z', WS, vPA, 's60').add(P2.p2_zloads()); stamp(zl, 'zpoll'); tail.append(P2.z_retry())
    if zn < 7: fills[zn].append(zl)
    for n, g in enumerate(Lg):
        f = fills.get(n, [])
        g, rest = weave(g, f, start=0, every=max(1, 48//max(1, len(f))), pred=isvalu); p.add(g).add(rest)
    stamp(p, 'gelu')
    if zn == 7: p.add(zl)
    gc = G2.g_consts(0); hc = G2.h_consts(232)
    def take(n):
        q = Prog(); q.l = gc.l[:n]; gc.l = gc.l[n:]; return q
    wrest = [g for k in range(nl, 14) for g in w2ld(k)]; n1, n2, n3 = [int(cfg.get(k, d)) for k, d in (('n1', 0), ('n2', 16), ('n3', 32))]
    c, rest = weave(P2.p2_inv_consts(), wrest[:n1], every=8, pred=isvalu); p.add(c).add(rest).add(G2.h_addr(224))
    hfl = flag_store('hst', f's_lshl2_add_u32 s56, s{sRB}, s{sW}\ns_lshl4_add_u32 s56, s56, s{sHC}\ns_lshl2_add_u32 s56, s56, {HF}')
    p.add(hfl)
    stamp(p, 'hfl')
    na, nb = int(cfg.get('na', 0)), int(cfg.get('nb', 8))
    c, rest = weave(hc, wrest[n1:n1+na], every=max(1, 40//max(1, na)), pred=isvalu); p.add(c).add(rest); n1 += na
    c, rest = weave(P2.p2_fwd(), wrest[n1:n1+nb], every=max(1, 16//max(1, nb)), pred=ismfma); assert not rest.l; p.add(c); n1 += nb
    n2 = max(n2, n1)
    stamp(p, 'fwd')
    hl = G2.h_loads()
    p.add(P2.p2_inv('CP0', G2.b2_init(), Prog()))
    stamp(p, 'p2')
    hpi = Prog()(f's_lshl_b32 s60, s{sBP}, 7\ns_lshl4_add_u32 s60, s{sW}, s60\ns_add_u32 s60, s60, {HF}\nv_and_b32 v{vPA}, 0x13, v0\nv_lshlrev_b32 v{vPA}, 2, v{vPA}')
    hpi.add(poll_issue(WS, vPA, 's60'))
    hp = int(cfg.get('hp', 4)); seg = wrest[n1:n2]
    if hp >= 0: seg.insert(hp, hpi)
    g1 = int(cfg.get('g1', 70)); c, rest = weave(take(g1), seg, every=max(1, (g1-6)//max(1, len(seg))), pred=isvalu); p.add(c).add(rest)
    yfl = flag_store('yst', f's_lshl4_add_u32 s56, s{sW}, s{sHC2}\ns_lshl4_add_u32 s56, s56, s{sCP}\ns_lshl2_add_u32 s56, s56, {YF}')
    p.add(yfl); stamp(p, 'yfl')
    if hp < 0: p.add(hpi)
    g2 = int(cfg.get('g2', 40)); c, rest = weave(take(g2), wrest[n2:n3], every=max(1, g2//max(1, n3-n2)), pred=isvalu); p.add(c).add(rest)
    p.add(poll_check('h', WS, vPA, 's60')); stamp(p, 'hpoll')
    wr = [g for k in range(nr, 14) for g in w2rd(k)]
    nh = int(cfg.get('nh', 8))
    p.add(flat(hl[:nh]))
    c, rest = weave(gc, hl[nh:16] + wrest[n3:], every=8, pred=isvalu); p.add(c).add(rest)
    stamp(p, 'gc2')
    ypi = Prog()(f's_lshr_b32 s60, s{sBP}, 3\ns_lshl2_add_u32 s60, s60, s{sW}\ns_lshl_b32 s60, s60, 8\ns_add_u32 s60, s60, {YF}\nv_lshlrev_b32 v{vPA}, 2, v0').add(poll_issue(WS, vPA, 's60'))
    yl = G2.y_loads(); yl[0] = stamp(poll_check('y', WS, vPA, 's60'), 'ypoll').add(yl[0])
    hl[int(cfg.get('yp', 42))].add(ypi)
    hl[34].wdsn('w2r13'); hl[34].add(G2.fin_loads())
    xr, xu = G2.fin_xread(); hl[52].add(xr)
    yr = G2.y_reads(); gw = G2.g_part_writes()
    m = G2.g2_mfmas()
    m, rest = weave(m, wr, start=int(cfg.get('rs', 1)), per=2, pred=ismfma); assert not rest.l
    m, rest = weave(m, G2.fin_addr(36), start=40, per=2, pred=ismfma); assert not rest.l
    m, rest = weave(m, xu, start=78, per=2, pred=ismfma); assert not rest.l
    m, rest = weave(m, gw[:8], start=106, per=2, pred=ismfma); assert not rest.l
    m, rest = weave(m, hl[16:], start=1, every=2, pred=ismfma); assert not rest.l
    m, rest = weave(m, yl, start=81+int(cfg.get('yd', 0)), pred=ismfma); assert not rest.l
    p.add(m)
    stamp(p, 'g2')
    for g in yr[:4]: p.add(g)
    rm = G2.r_mfmas(); nr1 = int(cfg.get('r1', 16))
    r1 = Prog(); r1.l = rm.l[:nr1]; r2 = Prog(); r2.l = rm.l[nr1:]
    f1 = gw[8:] + yr[4:]
    r1, rest = weave(r1, f1, pred=ismfma); p.add(r1).add(rest)
    p.wds(); p('s_barrier')
    rd, f = G2.silu_part()
    f2 = Prog().add(rd)
    fa = Prog(); fa.l = f.l[:56]; fb = Prog(); fb.l = f.l[56:]
    f2.add(fa)
    for k in range(4): f2.add(G2.r_pack(k))
    f2.add(fb)
    r2, rest = weave(r2, f2, per=2, pred=ismfma); p.add(r2)
    stamp(p, 'r')
    for k in range(4, 8): p.add(G2.r_pack(k))
    p.add(rest)
    p.add(G2.finish(cfg.get('sc', '')))
    stamp(p, 'fin')
    if diag:
        p('s_waitcnt vmcnt(0)'); stamp(p, 'end')
        if 'leak' in cfg:
            i = int(cfg['leak'])
            p(f'''s_waitcnt lgkmcnt(0)
            s_add_u32 s52, s{86+2*i}, 4000
            s_mov_b32 s3, 0
            LEAK:
            s_memrealtime s[54:55]
            s_add_u32 s3, s3, 1
            s_cmp_gt_u32 s3, 100000
            s_cbranch_scc1 EXIT
            s_waitcnt lgkmcnt(0)
            s_sub_u32 s54, s54, s52
            s_cmp_lt_i32 s54, 0
            s_cbranch_scc1 LEAK''')
        else: stamp_out(p, 0, 'EXIT')
    p('EXIT:'); return p
if __name__ == '__main__':
    diag = 'diag' in sys.argv[2:]
    cfg = dict(a.split('=') for a in sys.argv[2:] if '=' in a)
    st = {}
    if diag: STAMPS.extend(cfg.get('st', 'iss,g1,z,gelu,p2,g2,end').split(','))
    body = finalize(kernel(diag, cfg), st) + '    s_endpgm\n' + ''.join(tail) + 'CODE_END:\n'; print(st)
    if 'cyc' in sys.argv[1]: body = body.replace('s_memrealtime', 's_memtime')
    open(sys.argv[1], 'w').write(build_file([dict(name=NAME, grid=256, block=256, lds=163840, body=body, nfv=512, accum=256)], single=True))
```
